```python
import torch

def _softmax(x, axis=-1):
    return torch.softmax(x, dim=axis)
def _gelu(x):
    return torch.nn.functional.gelu(x, approximate="tanh")
def _silu(x):
    return torch.nn.functional.silu(x)
def _sigmoid(x):
    return torch.sigmoid(x)
def _layernorm(x, axis=-1, eps=1e-5):
    m = x.mean(dim=axis, keepdim=True)
    v = x.var(dim=axis, keepdim=True, unbiased=False)
    return (x - m) / torch.sqrt(v + eps)
def _scatter_add(tgt, idx, src, axis=0):
    return tgt.clone().index_add_(axis, idx, src)
def _segment_sum(src, seg, n):
    out = torch.zeros((n,) + src.shape[1:], dtype=src.dtype)
    return out.index_add_(0, seg, src)
def _pad(x, pw):
    flat = tuple(v for pair in reversed(pw) for v in pair)
    return torch.nn.functional.pad(x, flat)

kernel_name = 'sequential_preLN__sliding_block__moe_arch_mod__prompt'

def setup_inputs():

    _w = (lambda a: (lambda t: t.to(torch.bfloat16) if t.is_floating_point() else t)(torch.as_tensor(a)))
    def _A_setup():
        B, S, D = 1, 2048, 640
        return {
            "x": _w((lambda *s: torch.randn(*s, dtype=torch.bfloat16) * 0.05)(B, S, D)),
            "wqkv": _w((lambda *s: torch.randn(*s, dtype=torch.bfloat16) * 0.05)(D, 3 * D)),
            "wo": _w((lambda *s: torch.randn(*s, dtype=torch.bfloat16) * 0.05)(D, D)),
        }
    _A_in = _A_setup()

    def _B_setup():
        B, S, D, F, C = 1, 2048, 640, 1536, 8
        return {
            "x": _w((lambda *s: torch.randn(*s, dtype=torch.bfloat16) * 0.05)(B, S, D)),
            "w_r": _w((lambda *s: torch.randn(*s, dtype=torch.bfloat16) * 0.05)(D)),
            "w_gate": _w((lambda *s: torch.randn(*s, dtype=torch.bfloat16) * 0.05)(D, F)),
            "w_up": _w((lambda *s: torch.randn(*s, dtype=torch.bfloat16) * 0.05)(D, F)),
            "w_down": _w((lambda *s: torch.randn(*s, dtype=torch.bfloat16) * 0.05)(F, D)),
        }
    _B_in = _B_setup()

    return {
        "A_x": _A_in["x"],
        "A_wqkv": _A_in["wqkv"],
        "A_wo": _A_in["wo"],
        "B_x": _B_in["x"],
        "B_w_r": _B_in["w_r"],
        "B_w_gate": _B_in["w_gate"],
        "B_w_up": _B_in["w_up"],
        "B_w_down": _B_in["w_down"],
    }

def reference(A_x, A_wqkv, A_wo, B_x, B_w_r, B_w_gate, B_w_up, B_w_down):
    def _A_ref(x, wqkv, wo):
        B, S, D = x.shape
        H = 32; Dh = D // H; W = 256
        qkv = (lambda x, *d: x.permute(*d))((x @ wqkv).reshape(B, S, 3, H, Dh), 2, 0, 3, 1, 4)
        q, k, v = qkv[0], qkv[1], qkv[2]
        scores = torch.einsum("bhqd,bhkd->bhqk", q, k) * (Dh ** -0.5)
        idx = torch.arange(S)
        mask = (idx[:, None] - idx[None, :] >= 0) & (idx[:, None] - idx[None, :] < W)
        scores = torch.where(mask[None, None], scores, -1e9)
        p = _softmax(scores, axis=-1)
        o = torch.einsum("bhqk,bhkd->bhqd", p, v)
        return (lambda x, *d: x.permute(*d))(o, 0, 2, 1, 3).reshape(B, S, D) @ wo

    def _B_ref(x, w_r, w_gate, w_up, w_down):
        B, S, D = x.shape
        C = 8
        r = x @ w_r
        idx = torch.argsort(-r, axis=-1)[:, :C]
        idx_e = (lambda x, n, axis: torch.repeat_interleave(x, n, dim=axis))(idx.reshape(B, C, 1), D, axis=2)
        x_sel = (lambda x, i, axis: torch.take_along_dim(x, i, dim=axis))(x, idx_e, axis=1)
        g = _silu(x_sel @ w_gate)
        u = x_sel @ w_up
        y = (g * u) @ w_down
        r_sel = _sigmoid((lambda x, i, axis: torch.take_along_dim(x, i, dim=axis))(r, idx, axis=1))
        y = y * r_sel.reshape(B, C, 1)
        b_off = (torch.arange(B) * S).reshape(B, 1)
        flat_idx = (idx + b_off).reshape(B * C)
        zero = (x * 0.0).reshape(B * S, D)
        upd = _scatter_add(zero, flat_idx, y.reshape(B * C, D), axis=0)
        return x + upd.reshape(B, S, D)

    x = A_x
    h = x + _A_ref(_layernorm(x, axis=-1), A_wqkv, A_wo)
    h2 = h + _B_ref(_layernorm(h, axis=-1), B_w_r, B_w_gate, B_w_up, B_w_down)
    return h2
```

```python
import re

class Asm:
    def __init__(self):
        self.lines = []
        self.nlab = 0
    def __call__(self, s):
        for ln in s.split("\n"):
            ln = ln.strip()
            if ln:
                self.lines.append(ln)
    def label(self, base="L"):
        self.nlab += 1
        return f"{base}_{self.nlab}"

def vr(a, n=1):
    return f"v{a}" if n == 1 else f"v[{a}:{a+n-1}]"
def sr(a, n=1):
    return f"s{a}" if n == 1 else f"s[{a}:{a+n-1}]"

_reg = re.compile(r"^(-|abs\(|neg\()?([vsa])(\d+)\)?$")
_rng = re.compile(r"^(-|abs\(|neg\()?([vsa])\[(\d+):(\d+)\]\)?$")
def regs_of(op):
    op = op.strip()
    if op.startswith("|") and op.endswith("|"): op = op[1:-1]
    if op.startswith("-|") and op.endswith("|"): op = op[2:-1]
    m = _reg.match(op)
    if m: return {(m.group(2), int(m.group(3)))}
    m = _rng.match(op)
    if m: return {(m.group(2), i) for i in range(int(m.group(3)), int(m.group(4)) + 1)}
    if op == "vcc": return {("s", "vcc_lo"), ("s", "vcc_hi")}
    if op in ("vcc_lo", "vcc_hi"): return {("s", op)}
    if op == "exec": return {("s", "exec")}
    if op == "m0": return {("s", "m0")}
    return set()

TRANS = ("v_exp_", "v_log_", "v_rcp_", "v_rsq_", "v_sqrt_", "v_sin_", "v_cos_")
class Ins:
    def __init__(self, text):
        self.text = text
        t = text.split(";")[0].strip()
        self.is_label = t.endswith(":")
        self.is_dir = t.startswith(".")
        self.op = ""
        self.w = set(); self.r = set()
        self.kind = None
        self.C = set(); self.AB = set(); self.D = set(); self.passes = 0
        self.store_data = set(); self.wide = False
        self.dpp = False; self.trans = False; self.ldslds = False; self.sdwa = False
        self.target = None
        if self.is_label:
            self.name = t[:-1]; return
        if self.is_dir or not t:
            self.is_dir = True; return
        parts = t.split(None, 1)
        self.op = op = parts[0]
        rest = parts[1] if len(parts) > 1 else ""
        ops = []
        depth = 0; cur = ""
        for ch in rest:
            if ch == "[": depth += 1
            if ch == "]": depth -= 1
            if ch == "," and depth == 0:
                ops.append(cur.strip()); cur = ""
            else: cur += ch
        if cur.strip(): ops.append(cur.strip())
        mods = ""
        if ops:
            sp = ops[-1].split(None, 1)
            ops[-1] = sp[0]
            mods = sp[1] if len(sp) > 1 else ""
        self.ops = ops; self.mods = mods
        R = regs_of
        if op.startswith("v_mfma"):
            self.kind = "mfma"
            self.D = R(ops[0]); self.AB = R(ops[1]) | R(ops[2]); self.C = R(ops[3])
            self.w = set(self.D); self.r = self.AB | self.C
            self.passes = 8 if "32x32" in op else 4
            self.dkey = ops[0]; self.ckey = ops[3]
        elif op.startswith("v_"):
            self.kind = "valu"
            self.trans = op.startswith(TRANS)
            self.dpp = ("_dpp" in op) or any(k in mods for k in ("row_", "quad_perm", "wave_"))
            self.sdwa = "_sdwa" in op or "dst_sel" in mods or ("op_sel:" in mods and not op.startswith("v_pk_"))
            if op.startswith("v_cmp"):
                self.w = R(ops[0]);
                for o in ops[1:]: self.r |= R(o)
                assert not op.startswith("v_cmpx"), "no cmpx"
            elif op.startswith(("v_add_co", "v_sub_co", "v_addc_co", "v_subb_co", "v_subrev_co")):
                self.w = R(ops[0]) | R(ops[1])
                for o in ops[2:]: self.r |= R(o)
            elif op.startswith("v_permlane") or op.startswith("v_swap"):
                self.w = R(ops[0]) | R(ops[1]); self.r = set(self.w)
            elif op == "v_nop":
                pass
            else:
                self.w = R(ops[0])
                for o in ops[1:]: self.r |= R(o)
                if op.startswith(("v_fmac", "v_mac", "v_dot2c", "v_writelane")) or "UNUSED_PRESERVE" in mods or self.dpp:
                    self.r |= self.w
                if op.startswith("v_cndmask") and len(ops) == 3:
                    self.r |= R("vcc")
        elif op.startswith("ds_"):
            self.kind = "ds"
            if op.startswith(("ds_read", "ds_bpermute", "ds_permute", "ds_swizzle")) or "_rtn" in op:
                self.w = R(ops[0])
                for o in ops[1:]: self.r |= R(o)
            else:
                for o in ops: self.r |= R(o)
        elif op.startswith(("buffer_", "global_")):
            self.kind = "vmem"
            allm = (" " + mods + " ")
            if op.startswith("buffer_load") and " lds " in allm:
                self.ldslds = True
                for o in ops: self.r |= R(o)
                self.r |= {("s", "m0")}
            elif op.startswith("buffer_load"):
                self.w = R(ops[0])
                for o in ops[1:]: self.r |= R(o)
            elif op.startswith("buffer_store"):
                for o in ops: self.r |= R(o)
                if "x4" in op or "x3" in op:
                    self.wide = True; self.store_data = R(ops[0])
            elif op.startswith("buffer_atomic"):
                for o in ops: self.r |= R(o)
                if " sc0 " in allm: self.w = R(ops[0])
            else:
                raise ValueError("unsupported vmem " + text)
        elif op.startswith("s_"):
            self.kind = "salu"
            if op.startswith(("s_cbranch", "s_branch")):
                self.target = ops[0]
            elif op in ("s_waitcnt", "s_barrier", "s_nop", "s_endpgm", "s_setprio", "s_sleep"):
                pass
            elif op.startswith("s_cmp") or op.startswith("s_bitcmp"):
                for o in ops: self.r |= R(o)
            else:
                self.w = R(ops[0])
                for o in ops[1:]: self.r |= R(o)
                if "saveexec" in op: self.w |= {("s", "exec")}
        else:
            raise ValueError("unknown instr " + text)
    def ws(self):
        if self.is_label or self.is_dir: return 0
        if self.op == "s_nop": return int(self.ops[0], 0) + 1
        return 1

def vonly(s): return {x for x in s if x[0] in "va"}
def sonly(s): return {x for x in s if x[0] == "s"}

def need(p, c):
    n = 0
    if p.kind == "valu":
        wv = vonly(p.w); wsg = sonly(p.w)
        if c.kind == "mfma" and wv & c.r: n = max(n, 2)
        if c.kind == "valu":
            if wv & c.r:
                if p.trans and not c.trans: n = max(n, 1)
                if p.sdwa: n = max(n, 1)
                if c.dpp or c.op.startswith("v_permlane"): n = max(n, 2)
                if c.op.startswith(("v_readlane", "v_readfirstlane")): n = max(n, 1)
                if p.op.startswith("v_dot"):
                    if c.op == p.op:
                        ab = set()
                        for o in c.ops[1:3]: ab |= regs_of(o)
                        if wv & ab: n = max(n, 3)
                    else: n = max(n, 3)
            if p.op.startswith("v_dot") and c.op != p.op and wv & c.w: n = max(n, 3)
            if p.sdwa and wv & c.w: n = max(n, 1)
            if wsg & c.r:
                n = max(n, 2)
                if c.op.startswith(("v_readlane", "v_writelane")): n = max(n, 4)
        if c.kind in ("vmem", "ds", "mfma") and p.op.startswith("v_dot") and wv & (c.r | c.w): n = max(n, 3)
        if c.kind in ("vmem", "ds") and p.trans and wv & c.r: n = max(n, 1)
        if c.kind == "vmem" and wsg & c.r: n = max(n, 5)
    if p.kind == "mfma":
        big = 12 if p.passes == 8 else 8
        if c.kind == "mfma":
            if p.D & c.AB: n = max(n, big)
            if p.D & c.C:
                if not (p.dkey == c.ckey and p.passes == c.passes): n = max(n, big - 2)
            if p.D & c.D and not (p.D & c.C):
                n = max(n, big - 2) if not (p.dkey == c.dkey and p.passes == c.passes) else n
        elif c.kind == "valu":
            if p.D & (c.r | c.w): n = max(n, big)
            if p.C & c.w: n = max(n, 7 if p.passes == 8 else 3)
        elif c.kind in ("vmem", "ds"):
            if p.D & (c.r | c.w): n = max(n, big)
            if p.C & c.w: n = max(n, 7 if p.passes == 8 else 3)
    if p.kind == "salu" and ("s", "m0") in p.w and c.ldslds: n = max(n, 1)
    if p.kind == "vmem" and p.wide and p.store_data & c.w:
        n = max(n, 2 if c.kind in ("valu", "mfma") else 1)
    return n

MAXD = 12
def fix_hazards(lines, verbose=False):
    ins = [Ins(l) for l in lines]
    n = len(ins)
    pad = [0] * n
    br = {}
    for i, x in enumerate(ins):
        if x.target is not None: br.setdefault(x.target, []).append(i)
    for i, c in enumerate(ins):
        if c.is_label or c.is_dir or c.kind is None or c.kind == "salu": continue
        req = 0
        stack = [(i - 1, 0)]
        seen = set()
        while stack:
            j, d = stack.pop()
            first = True
            while j >= 0 and d < MAXD:
                if (j, d) in seen: break
                seen.add((j, d))
                p = ins[j]
                if p.is_label:
                    for b in br.get(p.name, []): stack.append((b, d))
                    j -= 1; first = False; continue
                if p.is_dir: j -= 1; continue
                if p.op in ("s_branch", "s_endpgm") and not first: break
                first = False
                nd = need(p, c)
                if nd > d: req = max(req, nd - d)
                d += p.ws() + pad[j]; j -= 1
        if req:
            pad[i] = req
            if verbose: print(f"hazard: +{req} before {c.text}")
    out = []
    for i, x in enumerate(ins):
        if pad[i]: out.append(f"s_nop {pad[i]-1}")
        out.append(x.text)
    return out, sum(pad)
```

```python
from asmlib import *
from gen import *

Q1, Q2, K1, K2, V0, V1, P = 8, 12, 16, 20, 24, 28, 32
SA, SB, OA, NM, DM, FM = 40, 56, 72, 88, 104, 120
VK1, VK2, VV, VO, VO2, VVD, VWO = 136, 137, 138, 139, 140, 141, 145
MRAW, MFR, MCS, XRAW, WRAW, WSUM = 152, 176, 200, 204, 214, 224
VMO = 150
OOB = 0x7F000000
NEG = f2u(-1e30)

def p2_pre(g):
    A = g.A
    A(f"s_and_b32 s42, s{W}, 3\ns_lshr_b32 s43, s{W}, 2")
    A(f"s_mul_i32 s56, s{CT}, {5*2048}\ns_add_u32 s56, s56, {WS_K - 2*163840}\ns_mul_i32 s57, s{RB}, 163840\ns_add_u32 s56, s56, s57")
    for n in range(4):
        A(f"s_add_u32 s3, s{W}, {8*n}\ns_mul_i32 s57, s3, 43\ns_lshr_b32 s57, s57, 8")
        A(f"s_mul_i32 s58, s57, 6\ns_sub_u32 s58, s3, s58")
        A(f"s_lshl_b32 s59, s58, 10\ns_mul_i32 s{48+n}, s57, 6144\ns_add_u32 s{48+n}, s{48+n}, s59\ns_add_u32 s{48+n}, s{48+n}, {L_K}")
        A(f"s_lshl_b32 s57, s57, 11\ns_and_b32 s59, s58, 1\ns_lshl_b32 s59, s59, 10\ns_add_u32 s57, s57, s59\ns_add_u32 s57, s57, s56")
        A(f"s_lshr_b32 s58, s58, 1\ns_mul_i32 s59, s58, 163840\ns_add_u32 s57, s57, s59")
        A(f"s_add_u32 s58, s58, s{RB}\ns_cmp_ge_u32 s58, 2\ns_cselect_b32 s{44+n}, s57, {OOB}")
    A(f"s_mul_i32 s56, s{RB}, {16*10240}\ns_mul_i32 s57, s{CT}, 640\ns_add_u32 s56, s56, s57\ns_add_u32 s56, s56, {WS_V - 32*10240}")
    A(f"s_sub_u32 s63, 7, s{W}")
    assert all((G * 1639) >> 16 == G // 40 for G in range(2048))
    for n in range(4):
        A(f"s_add_u32 s3, s63, {8*n}\ns_mul_i32 s57, s3, 26\ns_lshr_b32 s57, s57, 8\ns_add_u32 s57, s57, s{RB}")
        A(f"s_cmp_ge_u32 s57, 2\ns_cselect_b32 s{52+n}, s56, {OOB}")
        A(f"s_lshl_b32 s3, s3, 6\nv_add_u32 v2, s3, v1\nv_mul_u32_u24 v3, 1639, v2\nv_lshrrev_b32 v3, 16, v3")
        A(f"v_mul_u32_u24 v4, 40, v3\nv_sub_u32 v4, v2, v4\nv_mul_u32_u24 v3, 10240, v3\nv_lshl_add_u32 v{VVD+n}, v4, 4, v3")
    A(f"s_lshl_b32 s63, s63, 10\ns_add_u32 s63, s63, {L_V}")
    A(f"v_and_b32 v2, 31, v1\nv_lshrrev_b32 v3, 5, v1")
    A(f"s_lshl_b32 s3, s42, 9\ns_add_u32 s57, s3, {L_K + 2*6144}\nv_lshl_add_u32 v{VK2}, v2, 4, s57")
    A(f"s_mul_i32 s57, s43, {3*6144}\ns_add_u32 s57, s57, s3\ns_add_u32 s57, s57, {L_K}\nv_lshl_add_u32 v{VK1}, v2, 4, s57")
    A(f"v_mul_u32_u24 v4, 6144, v3\nv_add_u32 v{VK1}, v{VK1}, v4")
    A(f"s_mul_i32 s57, s42, 2560\ns_mul_i32 s58, s43, 320\ns_add_u32 s57, s57, s58\ns_add_u32 s57, s57, {L_V}")
    A(f"v_lshl_add_u32 v{VV}, v2, 4, s57\nv_mul_u32_u24 v4, 640, v3\nv_add_u32 v{VV}, v{VV}, v4")
    A(f"v_lshl_add_u32 v4, v3, 2, 0\nv_mov_b32 v5, {hex(NEG)}")
    for r in range(16):
        key = 8 * (r >> 2) + (r & 3)
        A(f"v_add_u32 v6, {key}, v4\nv_cmp_le_u32 vcc, v6, v2\nv_mov_b32 v{NM+r}, 0\nv_cndmask_b32 v{DM+r}, v5, 0, vcc\nv_cndmask_b32 v{FM+r}, 0, v5, vcc")
    for e in range(8): A(f"v_mov_b32 v{V0+e}, 0x3f803f80")
    A(f"s_lshl_b32 s3, s42, 9\nv_lshl_add_u32 v7, v2, 4, s3")
    A(f"s_mul_i32 s57, s43, {3*2048}\nv_lshl_add_u32 v6, v3, 11, v7\nv_add_u32 v6, s57, v6")
    A(f"v_lshlrev_b32 v{VO}, 4, v1\nv_lshlrev_b32 v{VO2}, 3, v2")
    A(f"v_lshrrev_b32 v4, 1, v1\nv_mul_lo_u32 v4, v4, s60\nv_and_b32 v5, 1, v1\nv_lshl_add_u32 v{VMO}, v5, 4, v4")

def p2_wo_dma(g):
    A = g.A
    assert all((G * 6554) >> 16 == G // 10 for G in range(320))
    for p in range(5):
        A(f"v_add_u32 v2, {64*p}, v1\nv_mul_u32_u24 v3, 6554, v2\nv_lshrrev_b32 v3, 16, v3\nv_mul_u32_u24 v4, 10, v3\nv_sub_u32 v4, v2, v4")
        A(f"v_mul_u32_u24 v3, 1280, v3\nv_lshl_add_u32 v{VWO+p}, v4, 4, v3")
    A(f"s_sub_u32 s42, s{W}, 4\ns_mul_i32 s43, s42, {5*32*1280}\ns_mul_i32 s44, s{CB}, 160\ns_add_u32 s43, s43, s44\ns_mul_i32 s44, s42, {25*1024}")
    return [(f"s_add_u32 m0, s44, {L_WO + (5*gq+p)*1024}\ns_add_u32 s45, s43, {gq*32*1280}\n"
             f"buffer_load_dwordx4 v{VWO+p}, s[{WO}:{WO+3}], s45 offen lds") for gq in range(5) for p in range(5)]

def p2_poll1(g):
    A = g.A
    A(f"v_bfe_u32 v2, v1, 2, 3\nv_cmp_eq_u32 vcc, 7, v2\nv_cndmask_b32 v2, v2, 0, vcc")
    A(f"v_add_u32 v3, 2, v2\nv_mul_u32_u24 v3, 86, v3\nv_lshrrev_b32 v3, 8, v3")
    A(f"v_mul_u32_u24 v4, 3, v3\nv_sub_u32 v4, v2, v4\nv_add_u32 v4, s{RB}, v4\nv_max_i32 v4, 0, v4")
    A(f"s_mul_i32 s3, s{CT}, 40\nv_bfe_u32 v5, v1, 1, 1\nv_mul_u32_u24 v5, 39, v5\nv_add_u32 v5, s3, v5\nv_lshrrev_b32 v5, 6, v5")
    A(f"v_mul_u32_u24 v3, 5, v3\nv_lshrrev_b32 v6, 1, v5\nv_add_u32 v3, v3, v6\nv_lshl_add_u32 v3, v4, 4, v3")
    A(f"v_and_b32 v5, 1, v5\nv_and_b32 v6, 1, v1\nv_lshl_add_u32 v5, v6, 1, v5\nv_lshl_add_u32 v3, v3, 2, v5\nv_lshlrev_b32 v3, 7, v3")
    if g.opts.get("ack1", 1): A("s_waitcnt vmcnt(0)")
    A(f"s_mov_b32 s58, {SPIN}\ns_mov_b32 s3, {WS_FLAG1}")
    A("L_H1_POLL:")
    A(f"buffer_load_dword v4, v3, s[{WS}:{WS+3}], s3 offen sc1\ns_waitcnt vmcnt(0)")
    A(f"v_cmp_ne_u32 vcc, s{TAG}, v4\ns_cbranch_vccz L_H1_OK")
    g.spin(58, "L_H1_POLL")
    A("L_H1_OK:")

def p2_loads(g):
    A = g.A
    A(f"v_lshlrev_b32 v2, 4, v1")
    A(f"s_mul_i32 s56, s{RB}, 163840\ns_mul_i32 s57, s{CT}, {5*2048}\ns_add_u32 s56, s56, s57\ns_add_u32 s56, s56, {WS_Q}\ns_add_u32 s57, s56, 4096")
    A(f"buffer_load_dwordx4 v[{Q1}:{Q1+3}], v6, s[{WS}:{WS+3}], s56 offen sc1")
    A(f"buffer_load_dwordx4 v[{Q2}:{Q2+3}], v7, s[{WS}:{WS+3}], s57 offen sc1")
    for n in (3, 2, 1, 0):
        if n == 3: A(f"s_cmp_ge_u32 s{W}, 6\ns_cbranch_scc1 L_P2_NK3")
        A(f"s_mov_b32 m0, s{48+n}\ns_nop 0\nbuffer_load_dwordx4 v2, s[{WS}:{WS+3}], s{44+n} offen sc1 lds")
        if n == 3: A(f"L_P2_NK3:\ns_cmp_lt_u32 s{W}, 2\ns_cbranch_scc1 L_P2_NV3")
        A(f"s_add_u32 m0, s63, {8*n*1024}\ns_nop 0\nbuffer_load_dwordx4 v{VVD+n}, s[{WS}:{WS+3}], s{52+n} offen sc1 lds")
        if n == 3: A("L_P2_NV3:")
    A("s_waitcnt vmcnt(0)")
    A(f"s_cmp_ge_u32 s{W}, 4\ns_cselect_b32 s44, 0, -1\ns_cselect_b32 s46, -1, 0\ns_mov_b32 s45, 0\ns_mov_b32 s47, 0")
    A(f"v_cndmask_b32 v{Q2}, 0, v{Q2}, s[44:45]\nv_cndmask_b32 v{Q2+1}, 0, v{Q2+1}, s[44:45]")
    A(f"v_cndmask_b32 v{Q2+2}, 0, v{Q2+2}, s[46:47]\nv_cndmask_b32 v{Q2+3}, 0, v{Q2+3}, s[46:47]")

def bg_loads(g):
    A = g.A
    A(f"s_lshl_b32 s57, s60, 5\ns_mov_b32 s56, s61")
    A(f"s_lshl_b32 s58, s{RT64}, 2\ns_add_u32 s58, s58, s{W}\ns_mul_i32 s58, s58, {16*1280}\ns_mul_i32 s59, s{CB}, 160\ns_add_u32 s58, s58, s59")
    A(f"s_mov_b32 s62, 0\ns_cmp_ge_u32 s{W}, 4\ns_cselect_b32 s58, {OOB}, s58\ns_cselect_b32 s59, {OOB}, s59\ns_cselect_b32 s62, {OOB}, s62")
    A(f"v_and_b32 v229, 15, v1\nv_mul_u32_u24 v229, 1280, v229\nv_lshrrev_b32 v230, 4, v1\nv_lshlrev_b32 v230, 3, v230\nv_add_u32 v229, v229, v230\nv_lshlrev_b32 v231, 2, v1")
    L = []
    for i in range(6):
        t = ""
        if i == 5: t += f"s_cmp_eq_u32 s{ROLE}, 2\ns_cselect_b32 s56, s56, {OOB}\n"
        t += f"buffer_load_dwordx4 v[{MRAW+4*i}:{MRAW+4*i+3}], v{VMO}, s[{MOE}:{MOE+3}], s56 offen"
        if i < 5: t += "\ns_add_u32 s56, s56, s57"
        L.append(t)
    for c in range(5):
        L.append(f"buffer_load_dwordx2 v[{XRAW+2*c}:{XRAW+2*c+1}], v229, s[{X}:{X+3}], s58 offen offset:{32*c}")
    for c in range(5):
        L.append(f"buffer_load_dwordx2 v[{WRAW+2*c}:{WRAW+2*c+1}], v230, s[{WR}:{WR+3}], s59 offen offset:{32*c}\n"
                 f"buffer_load_dword v{WSUM+c}, v231, s[{WR}:{WR+3}], s62 offen offset:{256*c}")
    return L

def rdK(j):
    return [f"ds_read_b128 v[{K1}:{K1+3}], v{VK1} offset:{(8-j)*512}", f"ds_read_b128 v[{K2}:{K2+3}], v{VK2} offset:{(8-j)*512}"]
def rdV(j):
    return ["s_mov_b64 exec, s[48:49]", f"ds_read_b128 v[{V0}:{V0+3}], v{VV} offset:{(8-j)*2560}",
            f"ds_read_b128 v[{V1}:{V1+3}], v{VV} offset:{(8-j)*2560+1280}", "s_mov_b64 exec, -1"]
def smf(S, C):
    return [f"v_mfma_f32_32x32x16_bf16 {vr(S,16)}, {vr(K1,4)}, {vr(Q1,4)}, {vr(C,16)}",
            f"v_mfma_f32_32x32x16_bf16 {vr(S,16)}, {vr(K2,4)}, {vr(Q2,4)}, {vr(S,16)}"]
def process(A, S, first, waitv):
    def e(r): A(f"v_exp_f32 v{S+r}, v{S+r}")
    def c(i): A(f"v_cvt_pk_bf16_f32 v{P+i}, v{S+2*i}, v{S+2*i+1}")
    for r in range(3): e(r)
    c(0); e(3); e(4); c(1); e(5); e(6); c(2); e(7); e(8); c(3); e(9); e(10)
    A(f"s_waitcnt lgkmcnt({waitv})")
    A(f"v_mfma_f32_32x32x16_bf16 {vr(OA,16)}, {vr(V0,4)}, {vr(P,4)}, {'0' if first else vr(OA,16)}")
    c(4); e(11); e(12); c(5); e(13); e(14); e(15); c(6); c(7)
    A(f"v_mfma_f32_32x32x16_bf16 {vr(OA,16)}, {vr(V1,4)}, {vr(P+4,4)}, {vr(OA,16)}")

def p2_attn(g):
    A = g.A
    A(f"s_and_b32 s42, s{W}, 3\ns_lshl_b32 s50, s{RB}, 2\ns_add_u32 s50, s50, s42")
    A("s_mov_b32 s48, 0xfffff\ns_mov_b32 s49, 0xfffff\ns_mov_b32 s51, 0")
    bg = bg_loads(g)
    A("s_cmp_ge_u32 s50, 8\ns_cbranch_scc1 L_AT_START0")
    for x in bg: A(x)
    A("L_AT_START:")
    A("s_mov_b32 s63, 1\ns_branch L_AT_GO\nL_AT_START0:\ns_mov_b32 s63, 0\nL_AT_GO:")
    for x in rdK(0) + rdV(0): A(x)
    A("s_waitcnt lgkmcnt(2)")
    for x in smf(SA, DM): A(x)
    for x in rdK(1): A(x)
    cur, nxt = SA, SB
    for j in range(1, 9):
        A(f"s_cmp_lt_u32 s50, {j}\ns_cbranch_scc1 L_AT_TAIL{j}")
        A("s_waitcnt lgkmcnt(0)" if j == 1 else "s_waitcnt lgkmcnt(2)")
        for x in smf(nxt, NM if j < 8 else FM): A(x)
        if j < 8:
            for x in rdK(j + 1): A(x)
        A(f"s_cmp_lg_u32 s63, 0\ns_cbranch_scc1 L_AT_NB{j}")
        for x in bg[2*(j-1):2*j]: A(x)
        A(f"L_AT_NB{j}:")
        process(A, cur, j == 1, 2 if j < 8 else 0)
        for x in rdV(j): A(x)
        cur, nxt = nxt, cur
    A("L_AT_TAIL3:\nL_AT_TAIL5:\nL_AT_TAIL7:")
    process(A, SA, False, 0)
    A("s_branch L_AT_DONE")
    A("L_AT_TAIL1:")
    process(A, SA, True, 0)
    A("s_branch L_AT_DONE")
    A("L_AT_TAIL2:\nL_AT_TAIL4:\nL_AT_TAIL6:\nL_AT_TAIL8:")
    process(A, SB, False, 0)
    A("L_AT_DONE:")
    A(f"s_mov_b32 s52, {hex(f2u(2.0**-60))}\ns_mov_b32 s53, {hex(f2u(2.0**60))}")
    A(f"v_cmp_le_f32 vcc, s52, v{OA+12}\nv_cmp_ge_f32 s[54:55], s53, v{OA+12}\nv_rcp_f32 v2, v{OA+12}")
    A("s_and_b64 vcc, vcc, s[54:55]\ns_cmp_eq_u64 vcc, -1\ns_cbranch_scc1 L_AT_OK")
    A("s_cmp_lg_u32 s51, 0\ns_cbranch_scc1 L_AT_OK")
    A(f"s_mov_b32 s51, 1\ns_mov_b32 s52, 0\ns_min_u32 s53, s50, 8\nv_mov_b32 v3, {hex(NEG)}")
    A(f"v_add_u32 v4, 4096, v{VK1}\nv_add_u32 v5, 4096, v{VK2}")
    A("L_AT_MX:")
    A(f"ds_read_b128 v[{K1}:{K1+3}], v4\nds_read_b128 v[{K2}:{K2+3}], v5\ns_waitcnt lgkmcnt(0)")
    A("s_cmp_eq_u32 s52, 0\ns_cbranch_scc1 L_AT_MXD\ns_cmp_eq_u32 s52, 8\ns_cbranch_scc1 L_AT_MXF")
    for x in smf(SA, NM): A(x)
    A("s_branch L_AT_MXC\nL_AT_MXD:")
    for x in smf(SA, DM): A(x)
    A("s_branch L_AT_MXC\nL_AT_MXF:")
    for x in smf(SA, FM): A(x)
    A("L_AT_MXC:")
    for r in range(0, 16, 2): A(f"v_max3_f32 v3, v3, v{SA+r}, v{SA+r+1}")
    A("v_subrev_u32 v4, 512, v4\nv_subrev_u32 v5, 512, v5")
    A("s_add_u32 s52, s52, 1\ns_cmp_le_u32 s52, s53\ns_cbranch_scc1 L_AT_MX")
    g.allred32([3], [4], op="v_max_f32")
    for r in range(48): A(f"v_sub_f32 v{NM+r}, v{NM+r}, v3")
    A("s_branch L_AT_START")
    A("L_AT_OK:")
    for r in range(12): A(f"v_mul_f32 v{OA+r}, v{OA+r}, v2")
    for i in range(6): A(f"v_cvt_pk_bf16_f32 v{P+i}, v{OA+2*i}, v{OA+2*i+1}")
    A(f"s_lshl_b32 s52, s50, 5\ns_lshl_b32 s53, s{CT}, 1\ns_add_u32 s52, s52, s53\ns_lshr_b32 s53, s{W}, 2\ns_add_u32 s52, s52, s53")
    A(f"s_mul_i32 s53, s52, 1280\ns_add_u32 s53, s53, {WS_O}")
    A(f"buffer_store_dwordx4 v[{P}:{P+3}], v{VO}, s[{WS}:{WS+3}], s53 offen sc1")
    A("s_mov_b32 exec_hi, 0")
    A(f"buffer_store_dwordx2 v[{P+4}:{P+5}], v{VO2}, s[{WS}:{WS+3}], s53 offen offset:1024 sc1")
    A("s_mov_b64 exec, -1")

def p2_post(g):
    A = g.A
    A("s_barrier")
    g.stamp(6)
    A(f"s_mul_i32 s42, s{W}, {PATCH}\ns_add_u32 s42, s42, {L_PATCH}")
    A(f"v_lshl_add_u32 v2, v1, 4, s42")
    A(f"v_lshrrev_b32 v3, 4, v1\nv_bfe_u32 v4, v1, 2, 2\nv_lshl_add_u32 v3, v3, 3, v4\nv_and_b32 v4, 3, v1\nv_lshlrev_b32 v4, 3, v4\nv_lshl_add_u32 v3, v3, 5, v4\nv_add_u32 v3, s42, v3")
    A("s_waitcnt vmcnt(2)")
    for i in range(6): A(f"ds_write_b128 v2, v[{MRAW+4*i}:{MRAW+4*i+3}] offset:{i*1024}")
    for e in range(4): A(f"v_mov_b32 v{K1+e}, 0x3f803f80")
    A("s_waitcnt lgkmcnt(0)")
    for i in range(6):
        for t in range(2):
            A(f"ds_read_b64_tr_b16 v[{MFR+4*i+2*t}:{MFR+4*i+2*t+1}], v3 offset:{i*1024+t*128}")
    A("s_waitcnt lgkmcnt(0)")
    for i in range(5):
        A(f"v_mfma_f32_16x16x32_bf16 {vr(MCS,4)}, {vr(MFR+4*i,4)}, {vr(K1,4)}, {'0' if i == 0 else vr(MCS,4)}")
    A(f"s_lshl_b32 s52, s52, 7\ns_add_u32 s52, s52, {WS_FLAG2}\nv_mov_b32 v4, s{TAG}\nv_mov_b32 v5, 0")
    A("s_waitcnt vmcnt(0)\ns_mov_b64 exec, 1")
    A(f"buffer_store_dword v4, v5, s[{WS}:{WS+3}], s52 offen sc1")
    A("s_mov_b64 exec, -1")
    g.stamp(7)

def p2(g):
    A = g.A
    A(f"s_cmp_ge_u32 s{W}, 4\ns_cbranch_scc1 L_P2_L")
    A(f"s_cmp_lg_u32 s{W}, 0\ns_cbranch_scc1 L_P2_C")
    p2_pre(g)
    A("v_mov_b32 v230, v6\nv_mov_b32 v231, v7")
    p2_poll1(g)
    A("v_mov_b32 v6, v230\nv_mov_b32 v7, v231")
    A("s_branch L_P2_J\nL_P2_L:")
    for x in p2_wo_dma(g): A(x)
    A("L_P2_C:")
    p2_pre(g)
    A("L_P2_J:")
    A("s_barrier")
    g.stamp(4)
    p2_loads(g)
    A("s_barrier")
    g.stamp(5)
    p2_attn(g)
    p2_post(g)
```

```python
from asmlib import *
from gen import *
from gen_p2 import MFR, MCS, XRAW, WRAW, WSUM

OF, OFR, ACC, WF = 8, 72, 88, 128
VW, VWR, VO0, VO1, VR0, VR1, VXW, VXR = 168, 169, 170, 171, 172, 173, 174, 175
VH, VH2, VPL, WS1, ONES, VFL = 229, 230, 231, 232, 233, 234
HB = 8
HF = 20
ST = 40
PA = 44
L_HM, L_CNT, L_SEL, L_CAND, L_RED = 0, 64, 256, 1024, 10240

def p3_pre(g):
    A = g.A
    A(f"s_lshr_b32 s42, s{W}, 1\ns_and_b32 s43, s{W}, 1")
    A("v_and_b32 v2, 15, v1\nv_lshrrev_b32 v3, 4, v1\nv_lshrrev_b32 v4, 5, v1\nv_and_b32 v5, 1, v3")
    A("v_bfe_u32 v6, v1, 2, 2\nv_and_b32 v7, 3, v1\nv_lshlrev_b32 v7, 3, v7")
    A(f"s_mul_i32 s44, s43, 51200\ns_add_u32 s44, s44, {L_WO}\nv_add_u32 v7, s44, v7")
    A(f"v_mul_u32_u24 v{VW}, 20, v4\nv_lshl_add_u32 v{VW}, v5, 2, v{VW}\nv_add_u32 v{VW}, v{VW}, v6\nv_mul_u32_u24 v{VW}, 160, v{VW}\nv_add_u32 v{VW}, v{VW}, v7")
    A(f"v_lshl_add_u32 v{VWR}, v4, 2, v5\nv_mul_u32_u24 v{VWR}, 20, v{VWR}\nv_add3_u32 v{VWR}, v{VWR}, 16, v6\nv_mul_u32_u24 v{VWR}, 160, v{VWR}\nv_add_u32 v{VWR}, v{VWR}, v7")
    for k in range(2):
        for x in wrd(k): A(x)
    A(f"v_mul_u32_u24 v{VO0}, 1280, v4\nv_lshl_add_u32 v{VO0}, v5, 9, v{VO0}\nv_lshl_add_u32 v{VO0}, v2, 4, v{VO0}")
    A(f"s_lshl_b32 s44, s43, 8\ns_xor_b32 s45, s44, 256\nv_add_u32 v{VO1}, s45, v{VO0}\nv_add_u32 v{VO0}, s44, v{VO0}")
    A(f"v_lshl_add_u32 v{VR0}, v4, 2, v5\nv_mul_u32_u24 v{VR0}, 1280, v{VR0}\nv_lshl_add_u32 v{VR0}, v2, 3, v{VR0}")
    A(f"s_lshl_b32 s44, s43, 7\ns_xor_b32 s45, s44, 128\nv_add_u32 v{VR1}, s45, v{VR0}\nv_add_u32 v{VR0}, s44, v{VR0}")
    A(f"s_lshl_b32 s44, s{RT64}, 1\ns_add_u32 s44, s44, s42\ns_lshl_b32 s44, s44, 5\ns_lshl_b32 s45, s43, 4\ns_add_u32 s44, s44, s45")
    A(f"s_mul_i32 s46, s44, 1280\ns_add_u32 s46, s46, {WS_O}")
    A(f"s_lshl_b32 s47, s44, 7\ns_add_u32 s47, s47, {WS_FLAG2}\nv_lshlrev_b32 v{VFL}, 7, v2")
    A(f"s_mul_i32 s44, s{W}, {PATCH}\ns_add_u32 s44, s44, {L_PATCH}\nv_lshl_add_u32 v{VXW}, v1, 4, s44")
    A(f"s_xor_b32 s44, s{W}, 1\ns_mul_i32 s44, s44, {PATCH}\ns_add_u32 s44, s44, {L_PATCH}\nv_lshl_add_u32 v{VXR}, v1, 4, s44")
    A(f"v_mul_u32_u24 v6, 1280, v2\nv_lshl_add_u32 v{VH2}, v3, 3, v6\nv_lshl_add_u32 v{VH}, v5, 5, v6\nv_lshl_add_u32 v{VH}, v4, 4, v{VH}")
    A(f"s_lshl_b32 s44, s{RT64}, 2\ns_add_u32 s59, s44, s{W}")
    A(f"s_mul_i32 s62, s59, {16*1280}\ns_mul_i32 s44, s{CB}, 160\ns_add_u32 s62, s62, s44\ns_add_u32 s63, s62, {WS_H}")
    A(f"s_lshl_b32 s56, s59, 11\ns_add_u32 s56, s56, {WS_PART}\ns_lshl_b32 s57, s{CB}, 8\ns_add_u32 s57, s57, s56")
    A(f"v_lshlrev_b32 v{VPL}, 4, v1")
    A(f"v_mov_b32 v{ONES}, 0x3f803f80")

def p3_pre2(g):
    A = g.A
    for c in range(5):
        for d in range(2):
            A(f"v_lshlrev_b32 v{ACC+4*c+2*d}, 16, v{XRAW+2*c+d}\nv_and_b32 v{ACC+4*c+2*d+1}, 0xffff0000, v{XRAW+2*c+d}")
    A(f"v_dot2_f32_bf16 v{WS1}, v{WSUM}, v{ONES}, 0")
    for c in range(1, 5): A(f"v_dot2_f32_bf16 v{WS1}, v{WSUM+c}, v{ONES}, v{WS1}")
    g.rowred(WS1); g.allred16([WS1], [2]); g.allred32([WS1], [2])

def wrd(k, ct=None):
    L = []
    for c in (range(5) if ct is None else [ct]):
        for t in range(2):
            d = WF + 20*(k & 1) + 4*c + 2*t
            if k < 8: L.append(f"ds_read_b64_tr_b16 v[{d}:{d+1}], v{VW} offset:{k*6400 + t*1280 + c*32}")
            else:     L.append(f"ds_read_b64_tr_b16 v[{d}:{d+1}], v{VWR} offset:{(k-8)*25600 + t*6400 + c*32}")
    return L

def p3_main(g):
    A = g.A
    p3_pre(g); p3_pre2(g)
    if g.opts.get("ack2", 1): A("s_waitcnt vmcnt(0)")
    A(f"s_mov_b32 s58, {SPIN}")
    A("L_H2_POLL:")
    A(f"buffer_load_dword v2, v{VFL}, s[{WS}:{WS+3}], s47 offen sc1\ns_waitcnt vmcnt(0)")
    A(f"v_cmp_ne_u32 vcc, s{TAG}, v2\ns_cbranch_vccz L_H2_OK")
    g.spin(58, "L_H2_POLL")
    A("L_H2_OK:")
    g.stamp(8)
    for j in range(8):
        if j: A("s_add_u32 s46, s46, 2560")
        for s in range(2):
            A(f"buffer_load_dwordx4 {vr(OF+4*(2*j+s),4)}, v{VO0+s}, s[{WS}:{WS+3}], s46 offen sc1")
    A(f"s_sub_u32 s46, s46, {7*2560}")
    for jj in range(2):
        if jj: A(f"s_add_u32 s46, s46, {8*1280}")
        for s in range(2):
            for t in range(2):
                A(f"buffer_load_dwordx2 {vr(OFR+4*(2*jj+s)+2*t,2)}, v{VR0+s}, s[{WS}:{WS+3}], s46 offen offset:{1024+t*2560} sc1")
    for k in range(10):
        vm = 24 - 2*(k+1) if k < 8 else (4 if k == 8 else 0)
        def m(c, s):
            a = ACC + 20*s + 4*c
            cc = "0" if (k == 0 and s == 1) else vr(a, 4)
            A(f"v_mfma_f32_16x16x32_bf16 {vr(a,4)}, {vr(WF+20*(k&1)+4*c,4)}, {vr(OF+4*(2*k+s),4)}, {cc}")
        if k < 9:
            for c in range(5):
                lg = 14 if k < 8 else min(14, 2*(4-c) + 10)
                if c == 0: A(f"s_waitcnt vmcnt({vm}) lgkmcnt({lg})")
                else: A(f"s_waitcnt lgkmcnt({lg})")
                m(c, 0); m(c, 1)
                if k < 8:
                    for x in wrd(k+2, c): A(x)
        else:
            A("s_waitcnt vmcnt(0) lgkmcnt(0)")
            for c in range(5): m(c, 1)
            for c in range(5):
                m(c, 0)
                if c >= 1: A(f"ds_write_b128 v{VXW}, {vr(ACC+20+4*(c-1),4)} offset:{(c-1)*1024}")
            A(f"ds_write_b128 v{VXW}, {vr(ACC+36,4)} offset:4096")
    A("s_waitcnt lgkmcnt(0)\ns_barrier")
    g.stamp(9)
    for c in range(5): A(f"ds_read_b128 {vr(ACC+20+4*c,4)}, v{VXR} offset:{c*1024}")
    A(f"v_mov_b32 v{ST+3}, s{TAG}")
    for c in range(5):
        A(f"s_waitcnt lgkmcnt({4-c})")
        for d in range(2): A(f"v_pk_add_f32 {vr(ACC+4*c+2*d,2)}, {vr(ACC+4*c+2*d,2)}, {vr(ACC+20+4*c+2*d,2)}")
        for d in range(2): A(f"v_cvt_pk_bf16_f32 v{HB+2*c+d}, v{ACC+4*c+2*d}, v{ACC+4*c+2*d+1}")
    for i in range(10):
        z = lambda r: "0" if i == 0 else f"v{r}"
        A(f"v_dot2_f32_bf16 v{ST}, v{HB+i}, v{ONES}, {z(ST)}")
        A(f"v_dot2_f32_bf16 v{ST+1}, v{HB+i}, v{HB+i}, {z(ST+1)}")
        A(f"v_dot2_f32_bf16 v{ST+2}, v{HB+i}, v{WRAW+i}, {z(ST+2)}")
    g.allred32([ST, ST+1, ST+2], [2, 3, 4]); g.allred16([ST, ST+1, ST+2], [2, 3, 4])
    A("s_mov_b64 exec, 0xffff")
    A(f"buffer_store_dwordx4 {vr(ST,4)}, v{VPL}, s[{WS}:{WS+3}], s57 offen sc1")
    A("s_mov_b64 exec, -1")
    for p in range(2):
        for d in range(2): A(f"v_permlane16_swap_b32 v{HB+4*p+d}, v{HB+4*p+2+d}")
    for p in range(2):
        A(f"buffer_store_dwordx4 {vr(HB+4*p,4)}, v{VH}, s[{WS}:{WS+3}], s63 offen offset:{64*p} sc1")
    A(f"buffer_store_dwordx2 {vr(HB+8,2)}, v{VH2}, s[{WS}:{WS+3}], s63 offen offset:128 sc1")
    for i in range(10):
        A(f"v_lshlrev_b32 v{HF+2*i}, 16, v{HB+i}\nv_and_b32 v{HF+2*i+1}, 0xffff0000, v{HB+i}")
    A(f"s_and_b32 s44, s{CB}, 1\ns_lshl_b32 s44, s44, 3\ns_lshl_b32 s52, 0x11, s44\ns_lshl_b32 s54, 0xff, s44\ns_mov_b32 s53, 0\ns_mov_b32 s55, 0")
    A(f"s_lshl_b32 s50, s59, 6\ns_add_u32 s50, s50, {WS_KEYS}\ns_lshl_b32 s51, s59, 8\ns_add_u32 s51, s51, {WS_STAT2}")
    A(f"s_mov_b32 s48, 0xffff\nv_lshlrev_b32 v7, 2, v1\nv_mov_b32 v58, s{TAG}\nv_mov_b32 v59, s{TAG}\nv_mov_b32 v63, s{TAG}")
    A("s_waitcnt vmcnt(0)\ns_barrier")
    A(f"s_mov_b32 s58, {SPIN}")
    A("L_H3_POLL:")
    A(f"buffer_load_dwordx4 {vr(PA,4)}, v{VPL}, s[{WS}:{WS+3}], s56 offen sc1")
    A(f"buffer_load_dwordx4 {vr(PA+4,4)}, v{VPL}, s[{WS}:{WS+3}], s56 offen offset:1024 sc1")
    A("s_waitcnt vmcnt(0)")
    A(f"v_cmp_ne_u32 vcc, s{TAG}, v{PA+3}\nv_cmp_ne_u32 s[44:45], s{TAG}, v{PA+7}\ns_or_b64 vcc, vcc, s[44:45]\ns_cbranch_vccz L_H3_OK")
    g.spin(58, "L_H3_POLL")
    A("L_H3_OK:")
    g.stamp(10)
    for e in range(3): A(f"v_add_f32 v{PA+e}, v{PA+e}, v{PA+4+e}")
    g.allred32([PA, PA+1, PA+2], [2, 3, 4]); g.allred16([PA, PA+1, PA+2], [2, 3, 4])
    M, RS, R = 60, 61, 62
    A(f"v_mul_f32 v{M}, {hex(f2u(1.0/640))}, v{PA}")
    A(f"v_mov_b32 v2, {hex(f2u(1e-5))}\nv_fmac_f32 v2, {hex(f2u(1.0/640))}, v{PA+1}\nv_fma_f32 v2, -v{M}, v{M}, v2")
    A(f"v_max_f32 v2, {hex(f2u(1e-5))}, v2\nv_rsq_f32 v{RS}, v2")
    A(f"v_fma_f32 v3, -v{M}, v{WS1}, v{PA+2}\nv_mul_f32 v{R}, v3, v{RS}")
    A(f"s_lshr_b32 s44, s{CB}, 1\ns_cmp_lg_u32 s44, s{W}\ns_cbranch_scc1 L_P3_NOPUB")
    A(f"v_cvt_pk_bf16_f32 v2, v{R}, v{R}\nv_ashrrev_i32 v3, 31, v2\nv_or_b32 v3, 0x80008000, v3\nv_xor_b32 v2, v2, v3")
    A("v_mov_b32_dpp v3, v2 quad_perm:[1,1,3,3] row_mask:0xf bank_mask:0xf\nv_bfi_b32 v56, s48, v2, v3")
    A("v_mov_b32_dpp v57, v56 quad_perm:[2,2,2,2] row_mask:0xf bank_mask:0xf")
    A(f"s_mov_b64 exec, s[52:53]\nbuffer_store_dwordx4 v[56:59], v7, s[{WS}:{WS+3}], s50 offen sc1")
    A(f"s_mov_b64 exec, s[54:55]\nbuffer_store_dwordx4 v[60:63], v{VPL}, s[{WS}:{WS+3}], s51 offen sc1")
    A("s_mov_b64 exec, -1")
    A("L_P3_NOPUB:")
    A(f"v_add_f32 v4, 1.0, v{RS}\nv_mul_f32 v6, v{M}, v{RS}")
    for i in range(10):
        A(f"v_pk_fma_f32 {vr(HF+2*i,2)}, {vr(HF+2*i,2)}, v[4:5], v[6:7] op_sel_hi:[1,0,0] neg_lo:[0,0,1] neg_hi:[0,0,1]")
    for i in range(10): A(f"v_cvt_pk_bf16_f32 v{HB+i}, v{HF+2*i}, v{HF+2*i+1}")
    for p in range(2):
        A(f"buffer_store_dwordx4 {vr(HB+4*p,4)}, v{VH}, s[{OUT}:{OUT+3}], s62 offen offset:{64*p} sc1")
    A(f"buffer_store_dwordx2 {vr(HB+8,2)}, v{VH2}, s[{OUT}:{OUT+3}], s62 offen offset:128 sc1")
    A(f"s_lshl_b32 s44, s59, 3\ns_add_u32 s44, s44, s{CB}\ns_lshl_b32 s44, s44, 7\ns_add_u32 s44, s44, {WS_TOK2}\nv_mov_b32 v2, 0")
    A(f"s_cmp_eq_u32 s{ROLE}, 0\ns_cbranch_scc1 L_P3_NB17")
    A("s_waitcnt vmcnt(4)\ns_barrier")
    A("L_P3_NB17:")
    A("s_waitcnt vmcnt(0)\ns_mov_b64 exec, 1")
    A(f"buffer_store_dword v63, v2, s[{WS}:{WS+3}], s44 offen sc1")
    A("s_mov_b64 exec, -1")
    A(f"s_cmp_eq_u32 s{ROLE}, 0\ns_cbranch_scc1 L_END")
    A("s_barrier\ns_barrier")

def keys_waves(g):
    A = g.A
    KY, IX = 16, 24
    A("s_barrier")
    A(f"s_cmp_eq_u32 s{ROLE}, 0\ns_cbranch_scc1 L_END")
    A(f"v_mov_b32 v2, 0\nv_lshlrev_b32 v3, 2, v1\nds_write_b32 v3, v2\nds_write_b32 v3, v2 offset:{L_CAND}")
    A(f"s_sub_u32 s42, s{W}, 4\ns_lshl_b32 s43, s42, 9\ns_sub_u32 s43, 2047, s43\nv_sub_u32 v{IX}, s43, v3")
    for e in range(1, 8): A(f"v_subrev_u32 v{IX+e}, {(e & 3) + 256*(e >> 2)}, v{IX}")
    A(f"s_lshl_b32 s43, s42, 11\ns_add_u32 s43, s43, {WS_KEYS}\nv_lshlrev_b32 v4, 4, v1\ns_mov_b32 s48, 0xffff0000")
    A(f"v_lshrrev_b32 v5, 3, v1\nv_lshlrev_b32 v5, 2, v5\nv_and_b32 v6, 7, v1\nv_lshlrev_b32 v6, 2, v6\nv_mov_b32 v7, 1")
    A("s_waitcnt lgkmcnt(0)\ns_barrier\ns_barrier")
    A(f"s_mov_b32 s58, {SPIN}")
    A("L_H4_POLL:")
    A(f"buffer_load_dwordx4 v[8:11], v4, s[{WS}:{WS+3}], s43 offen sc1")
    A(f"buffer_load_dwordx4 v[12:15], v4, s[{WS}:{WS+3}], s43 offen offset:1024 sc1")
    A("s_waitcnt vmcnt(0)")
    A(f"v_cmp_ne_u32 vcc, s{TAG}, v11\nv_cmp_ne_u32 s[44:45], s{TAG}, v15\ns_or_b64 vcc, vcc, s[44:45]\ns_cbranch_vccz L_H4_OK")
    g.spin(58, "L_H4_POLL")
    A("L_H4_OK:")
    g.stamp(10)
    for e in range(8):
        d = 8 + 4*(e >> 2) + ((e >> 1) & 1)
        if e & 1: A(f"v_and_or_b32 v{KY+e}, v{d}, s48, v{IX+e}")
        else:     A(f"v_lshl_or_b32 v{KY+e}, v{d}, 16, v{IX+e}")
    A(f"v_max3_u32 v8, v{KY}, v{KY+1}, v{KY+2}\nv_max3_u32 v9, v{KY+3}, v{KY+4}, v{KY+5}\nv_max3_u32 v8, v8, v{KY+6}, v{KY+7}\nv_max_u32 v8, v8, v9")
    A(f"ds_max_u32 v5, v8 offset:{L_HM}\nds_max_u32 v6, v8 offset:{L_HM+32}")
    A("s_waitcnt lgkmcnt(0)\ns_barrier")
    for q in range(4): A(f"ds_read_b128 v[{32+4*q}:{35+4*q}], v2 offset:{L_HM+16*q}")
    A("s_waitcnt lgkmcnt(2)\nv_min3_u32 v8, v32, v33, v34\nv_min3_u32 v9, v35, v36, v37\nv_min3_u32 v8, v8, v38, v39")
    A("s_waitcnt lgkmcnt(0)\nv_min3_u32 v10, v40, v41, v42\nv_min3_u32 v11, v43, v44, v45\nv_min3_u32 v10, v10, v46, v47")
    A("v_min_u32 v8, v8, v9\nv_min_u32 v10, v10, v11\nv_max_u32 v8, v8, v10")
    for e in range(8): A(f"v_cmp_le_u32 s[{42+2*e}:{43+2*e}], v8, v{KY+e}")
    for e in range(8): A(f"s_mov_b64 exec, s[{42+2*e}:{43+2*e}]\nds_add_rtn_u32 v{32+e}, v2, v7 offset:{L_CNT}")
    A("s_waitcnt lgkmcnt(0)")
    for e in range(8):
        A(f"s_mov_b64 exec, s[{42+2*e}:{43+2*e}]\nv_lshlrev_b32 v{32+e}, 2, v{32+e}\nds_write_b32 v{32+e}, v{KY+e} offset:{L_CAND}")
    A("s_mov_b64 exec, -1\ns_waitcnt lgkmcnt(0)\ns_barrier")

def select(g):
    A = g.A
    A("v_mov_b32 v2, 0\nv_and_b32 v3, 31, v1\nv_lshlrev_b32 v4, 2, v3\nv_lshrrev_b32 v5, 5, v1\nv_lshlrev_b32 v5, 6, v5")
    A(f"ds_read_b32 v6, v2 offset:{L_CNT}\nds_read_b32 v7, v4 offset:{L_CAND}")
    for q in range(4): A(f"ds_read_b128 v[{16+4*q}:{19+4*q}], v5 offset:{L_CAND+16*q}")
    A(f"s_lshl_b32 s42, s{W}, 5\ns_add_u32 s42, s42, {L_SEL}\nv_and_b32 v9, 7, v1\nv_lshl_add_u32 v9, v9, 2, s42\nv_mov_b32 v10, 0\nv_mov_b32 v11, 0")
    A("s_waitcnt lgkmcnt(5)\nv_readfirstlane_b32 s43, v6\ns_cmp_gt_u32 s43, 32\ns_cbranch_scc1 L_SEL_GEN")
    for q in range(4):
        A(f"s_waitcnt lgkmcnt({3-q})")
        for e in range(4): A(f"v_cmp_gt_u32 s[{44+2*e}:{45+2*e}], v{16+4*q+e}, v7")
        for e in range(4): A(f"v_addc_co_u32 v{10+(e&1)}, vcc, 0, v{10+(e&1)}, s[{44+2*e}:{45+2*e}]")
    A("v_add_u32 v10, v10, v11")
    g.allred32([10], [11], op="v_add_u32")
    A("v_cmp_gt_u32 vcc, s43, v3\nv_cmp_gt_u32 s[44:45], 8, v10\nv_lshl_add_u32 v10, v10, 2, s42\ns_and_b64 exec, vcc, s[44:45]")
    A("ds_write_b32 v10, v7\ns_mov_b64 exec, -1")
    A("s_branch L_SEL_RD")
    A("L_SEL_GEN:")
    A(f"s_waitcnt lgkmcnt(0)\nv_add_u32 v3, s43, v1\nv_lshlrev_b32 v3, 2, v3\ns_mov_b64 exec, 15\nds_write_b32 v3, v2 offset:{L_CAND}\ns_mov_b64 exec, -1")
    A("s_mov_b32 s52, 0")
    A("L_SEL_O:")
    A(f"v_add_u32 v3, s52, v1\nv_lshlrev_b32 v4, 2, v3\nds_read_b32 v7, v4 offset:{L_CAND}\nv_mov_b32 v10, 0\ns_mov_b32 s53, 0\nv_mov_b32 v5, 0")
    A("L_SEL_I:")
    A(f"ds_read_b128 v[16:19], v5 offset:{L_CAND}\nv_add_u32 v5, 16, v5\ns_waitcnt lgkmcnt(0)")
    for e in range(4): A(f"v_cmp_gt_u32 s[{44+2*e}:{45+2*e}], v{16+e}, v7")
    for e in range(4): A(f"v_addc_co_u32 v10, vcc, 0, v10, s[{44+2*e}:{45+2*e}]")
    A("s_add_u32 s53, s53, 4\ns_cmp_lt_u32 s53, s43\ns_cbranch_scc1 L_SEL_I")
    A("v_cmp_gt_u32 vcc, s43, v3\nv_cmp_gt_u32 s[44:45], 8, v10\nv_lshl_add_u32 v10, v10, 2, s42\ns_and_b64 exec, vcc, s[44:45]")
    A("ds_write_b32 v10, v7\ns_mov_b64 exec, -1")
    A("s_add_u32 s52, s52, 64\ns_cmp_lt_u32 s52, s43\ns_cbranch_scc1 L_SEL_O")
    A("L_SEL_RD:")
    A("ds_read_b32 v8, v9\nv_lshrrev_b32 v3, 4, v1\ns_waitcnt lgkmcnt(0)\nv_and_b32 v8, 0x7ff, v8\nv_sub_u32 v8, 0x7ff, v8")
    g.stamp(11)

def stat2_wait(g, lab, extra=None):
    A = g.A
    A(f"s_mov_b32 s58, {SPIN}\n{lab}:\ns_waitcnt vmcnt(0)")
    A(f"v_cmp_ne_u32 vcc, s{TAG}, v15")
    if extra: A(f"v_cmp_ne_u32 s[44:45], s{TAG}, v{extra[1]}\ns_or_b64 vcc, vcc, s[44:45]")
    A(f"s_cbranch_vccz {lab}_OK")
    A(f"buffer_load_dwordx4 v[12:15], v10, s[{WS}:{WS+3}], s46 offen sc1")
    if extra: A(extra[0])
    g.spin(58, lab)
    A(f"s_waitcnt vmcnt(0)\n{lab}_OK:")

def moe(g):
    A = g.A
    BF, AC = 16, 44
    A(f"v_mul_u32_u24 v9, 1280, v8\nv_lshlrev_b32 v10, 4, v8\ns_mov_b32 s46, {WS_STAT2}")
    A(f"s_lshl_b32 s47, s{W}, 10\ns_add_u32 s47, s47, {L_RED}\nv_lshl_add_u32 v11, v1, 4, s47")
    A(f"s_cmp_eq_u32 s{ROLE}, 2\ns_cbranch_scc1 L_MOE_D")
    A(f"s_and_b32 s43, s{W}, 3\ns_mul_i32 s43, s43, 320\ns_add_u32 s43, s43, {WS_H}\nv_lshl_add_u32 v9, v3, 4, v9")
    A(f"buffer_load_dwordx4 v[12:15], v10, s[{WS}:{WS+3}], s46 offen sc1")
    for i in range(5): A(f"buffer_load_dwordx4 {vr(BF+4*i,4)}, v9, s[{WS}:{WS+3}], s43 offen offset:{64*i} sc1")
    A("v_lshrrev_b32 v4, 5, v1\nv_bfe_u32 v5, v1, 1, 1\nv_lshl_add_u32 v4, v4, 1, v5\nv_bfe_u32 v5, v1, 2, 3\nv_lshl_add_u32 v4, v4, 4, v5")
    A(f"v_and_b32 v5, 1, v1\nv_lshlrev_b32 v5, 3, v5\nv_lshl_add_u32 v4, v4, 4, v5\nv_lshlrev_b32 v5, 2, v1")
    A(f"s_lshl_b32 s47, s{GI}, 8\ns_add_u32 s47, s47, {WS_HID}")
    stat2_wait(g, "L_G_ST")
    for e in range(4): A(f"v_mul_f32 v{AC+e}, -v12, v{MCS+e}" .replace("v_mul_f32", "v_mul_f32_e64"))
    for i in range(5): A(f"v_mfma_f32_16x16x32_bf16 {vr(AC,4)}, {vr(MFR+4*i,4)}, {vr(BF+4*i,4)}, {vr(AC,4)}")
    for e in range(4): A(f"v_mul_f32 v{AC+e}, v13, v{AC+e}")
    A(f"ds_write_b128 v11, {vr(AC,4)}\ns_waitcnt lgkmcnt(0)\ns_barrier")
    A(f"s_cmp_lg_u32 s{W}, 0\ns_cbranch_scc1 L_END")
    for q in range(8): A(f"ds_read_b64 v[{16+2*q}:{17+2*q}], v4 offset:{L_RED+1024*q}")
    A("s_waitcnt lgkmcnt(4)\nv_pk_add_f32 v[16:17], v[16:17], v[18:19]\nv_pk_add_f32 v[20:21], v[20:21], v[22:23]\nv_pk_add_f32 v[16:17], v[16:17], v[20:21]")
    A(f"v_mul_f32 v18, {hex(f2u(-math.log2(math.e)))}, v16\nv_mul_f32 v19, {hex(f2u(-math.log2(math.e)))}, v17\nv_exp_f32 v18, v18\nv_exp_f32 v19, v19")
    A("s_waitcnt lgkmcnt(0)\nv_pk_add_f32 v[24:25], v[24:25], v[26:27]\nv_pk_add_f32 v[28:29], v[28:29], v[30:31]")
    A("v_add_f32 v18, 1.0, v18\nv_add_f32 v19, 1.0, v19\nv_rcp_f32 v18, v18\nv_rcp_f32 v19, v19\nv_pk_add_f32 v[24:25], v[24:25], v[28:29]")
    A("v_pk_mul_f32 v[16:17], v[16:17], v[24:25]\nv_pk_mul_f32 v[16:17], v[16:17], v[18:19]\nv_cvt_pk_bf16_f32 v16, v16, v17")
    A(f"buffer_store_dword v16, v5, s[{WS}:{WS+3}], s47 offen sc1")
    g.stamp(12)
    A("s_branch L_END")
    A("L_MOE_D:")
    A(f"v_and_b32 v4, 7, v1\nv_lshlrev_b32 v4, 4, v4\nv_lshl_add_u32 v4, v3, 7, v4\ns_mul_i32 s43, s{W}, 3072\ns_add_u32 s43, s43, {WS_HID}")
    A(f"s_cmp_lg_u32 s{W}, 0\ns_cbranch_scc1 L_D_NPRE")
    A(f"v_lshl_add_u32 v9, v3, 3, v9\ns_lshl_b32 s50, s{GI}, 5\ns_add_u32 s51, s50, {WS_H}")
    A(f"v_lshrrev_b32 v5, 4, v8\nv_lshlrev_b32 v5, 10, v5\ns_lshl_b32 s52, s{XCD}, 7\ns_add_u32 s52, s52, {WS_TOK2}")
    fl = f"buffer_load_dword v6, v5, s[{WS}:{WS+3}], s52 offen sc1"
    A(f"buffer_load_dwordx4 v[12:15], v10, s[{WS}:{WS+3}], s46 offen sc1\n{fl}")
    A(f"buffer_load_dwordx2 v[48:49], v9, s[{WS}:{WS+3}], s51 offen sc1")
    stat2_wait(g, "L_D_ST", (fl, 6))
    A(f"v_mul_f32 v14, {hex(f2u(-math.log2(math.e)))}, v14\nv_exp_f32 v14, v14\nv_add_f32 v7, 1.0, v13\nv_mul_f32 v12, v12, v13")
    A("v_lshlrev_b32 v50, 16, v48\nv_and_b32 v51, 0xffff0000, v48\nv_lshlrev_b32 v52, 16, v49\nv_and_b32 v53, 0xffff0000, v49")
    A("v_add_f32 v14, 1.0, v14\nv_rcp_f32 v14, v14")
    for e in range(4): A(f"v_fma_f32 v{50+e}, v{50+e}, v7, -v12")
    A("s_branch L_D_POLL0\nL_D_NPRE:")
    if g.opts.get("dwait", 1):
        A(f"buffer_load_dwordx4 v[12:15], v10, s[{WS}:{WS+3}], s46 offen sc1\ns_waitcnt vmcnt(0)")
    A(f"L_D_POLL0:\ns_mov_b32 s58, {SPIN}")
    A("L_H5_POLL:")
    for i in range(6): A(f"buffer_load_dwordx4 {vr(BF+4*i,4)}, v4, s[{WS}:{WS+3}], s43 offen offset:{512*i} sc1")
    for i in range(6):
        A(f"s_waitcnt vmcnt({5-i})")
        b = BF + 4*i
        if i == 0: A(f"v_max3_u32 v2, v{b}, v{b+1}, v{b+2}\nv_max_u32 v2, v2, v{b+3}")
        else: A(f"v_max3_u32 v2, v2, v{b}, v{b+1}\nv_max3_u32 v2, v2, v{b+2}, v{b+3}")
    A("v_cmp_eq_u32 vcc, -1, v2\ns_cbranch_vccz L_H5_OK")
    g.spin(58, "L_H5_POLL")
    A("L_H5_OK:")
    g.stamp(12)
    for i in range(6): A(f"v_mfma_f32_16x16x32_bf16 {vr(AC,4)}, {vr(MFR+4*i,4)}, {vr(BF+4*i,4)}, {'0' if i == 0 else vr(AC,4)}")
    A(f"ds_write_b128 v11, {vr(AC,4)}\ns_waitcnt lgkmcnt(0)\ns_barrier")
    A(f"s_cmp_lg_u32 s{W}, 0\ns_cbranch_scc1 L_END")
    for q in range(8): A(f"ds_read_b128 {vr(16+4*q,4)}, v11 offset:{1024*q}")
    for lv, wt in ((1, (6, 4, 2, 0)), (2, None), (4, None)):
        for n, q in enumerate(range(0, 8, 2*lv)):
            if wt: A(f"s_waitcnt lgkmcnt({wt[n]})")
            for d in range(2): A(f"v_pk_add_f32 {vr(16+4*q+2*d,2)}, {vr(16+4*q+2*d,2)}, {vr(16+4*(q+lv)+2*d,2)}")
    for e in range(4): A(f"v_fmac_f32 v{50+e}, v14, v{16+e}")
    A("v_cvt_pk_bf16_f32 v48, v50, v51\nv_cvt_pk_bf16_f32 v49, v52, v53")
    A("s_mov_b32 exec_lo, 0x00ff00ff\ns_mov_b32 exec_hi, 0x00ff00ff")
    A(f"buffer_store_dwordx2 v[48:49], v9, s[{OUT}:{OUT+3}], s50 offen sc1")
    A(f"s_cmp_lg_u32 s{GI}, 0\ns_cbranch_scc1 L_END")
    A(f"s_mov_b64 exec, 1\nv_mov_b32 v2, s{TAG}\nv_mov_b32 v3, 0\nbuffer_store_dword v2, v3, s[{WS}:{WS+3}], 0 offen sc1")

def p3(g):
    A = g.A
    A(f"s_cmp_ge_u32 s{W}, 4\ns_cbranch_scc1 L_P3_K")
    p3_main(g)
    A("s_branch L_SEL\nL_P3_K:")
    keys_waves(g)
    A("L_SEL:")
    select(g)
    moe(g)
```

```python
import sys, math
sys.path.insert(0, "work")
from asmlib import *

NAME = "sequential_preLN__sliding_block__moe_arch_mod__prompt"
KN = NAME + "_kernel"

WS_STAT1 = 0x10000
WS_FLAG1 = 0x20000
WS_FLAG2 = 0x40000
WS_PART  = 0x80000
WS_KEYS  = 0xC0000
WS_STAT2 = 0xC4000
WS_TOK2  = 0xD0000
WS_HID   = 0xF0000
WS_Q = 0x100000
WS_K = 0x400000
WS_V = 0x700000
WS_O = 0xA00000
WS_H = 0xD00000
WS_STAMP = 0x1000000
WS_SIZE = 0x1100000

L_XR = 0
L_WR = 65536
L_MPK = 131072
L_RSTD = 131584
L_WO = 0
L_K = 102400
L_V = 133120
L_PATCH = 102400
PATCH = 7680

X, WQ, WO, WS, OUT, MOE, WR = 4, 8, 12, 16, 20, 24, 28
TAG, W, XCD, LOC, RB, CT, RT64, CB, ROLE, GI = 32, 33, 34, 35, 36, 37, 38, 39, 40, 41
SPIN = 50000
QSCALE = (20 ** -0.5) * math.log2(math.e)

def f2u(x):
    import struct
    return struct.unpack("<I", struct.pack("<f", x))[0]

class Gen:
    def __init__(self, stop=None, stamps=False, opts=None):
        self.A = Asm()
        self.stop = stop
        self.stamps = stamps
        self.opts = opts or {}
        self.nstamp = 0
        self.clk = 's_memtime' if self.opts.get('cyc') else 's_memrealtime'

    def stamp(self, idx):
        if not self.stamps: return
        A = self.A
        if self.opts.get("dual"):
            if idx == 13: idx = 6
            A(f"s_memrealtime s[100:101]\ns_waitcnt lgkmcnt(0)\ns_mov_b32 s{86+idx}, s100")
            A(f"s_memtime s[100:101]\ns_waitcnt lgkmcnt(0)\ns_mov_b32 s{93+idx}, s100")
            return
        A(f"{self.clk} s[100:101]\ns_waitcnt lgkmcnt(0)\ns_mov_b32 s{86+idx}, s100")

    def finish(self):
        A = self.A
        A("L_END:")
        if self.stamps:
            self.stamp(13)
            A("s_waitcnt vmcnt(0)")
            A("s_mov_b64 exec, -1")
            A(f"s_lshl_b32 s42, s2, 3\ns_add_u32 s42, s42, s{W}\ns_lshl_b32 s42, s42, 6\ns_add_u32 s42, s42, {WS_STAMP}")
            A("v_mov_b32 v1, 0")
            for i in range(14):
                A(f"v_writelane_b32 v1, s{86+i}, {i}")
            A("v_and_b32 v2, 63, v0\nv_lshlrev_b32 v3, 2, v2\nv_cmp_gt_u32 vcc, 16, v2\ns_and_saveexec_b64 s[44:45], vcc")
            A(f"buffer_store_dword v1, v3, s[{WS}:{WS+3}], s42 offen")
        A("L_EXIT:")
        A("s_endpgm")

    def srd(self, d, p, size):
        self.A(f"s_mov_b32 s{d}, s{p}\ns_mov_b32 s{d+1}, s{p+1}\ns_mov_b32 s{d+2}, {size}\ns_mov_b32 s{d+3}, 0x20000")

    def spin(self, cnt, lab):
        self.A(f"s_sub_u32 s{cnt}, s{cnt}, 1\ns_cmp_lg_u32 s{cnt}, 0\ns_cbranch_scc1 {lab}")

    def allred32(self, regs, tmp, op="v_add_f32"):
        A = self.A
        for r, t in zip(regs, tmp): A(f"v_mov_b32 v{t}, v{r}")
        for r, t in zip(regs, tmp): A(f"v_permlane32_swap_b32 v{r}, v{t}")
        for r, t in zip(regs, tmp): A(f"{op} v{r}, v{r}, v{t}")
    def allred16(self, regs, tmp, op="v_add_f32"):
        A = self.A
        for r, t in zip(regs, tmp): A(f"v_mov_b32 v{t}, v{r}")
        for r, t in zip(regs, tmp): A(f"v_permlane16_swap_b32 v{r}, v{t}")
        for r, t in zip(regs, tmp): A(f"{op} v{r}, v{r}, v{t}")
    def rowred(self, r, op="v_add_f32"):
        for k in (8, 4, 2, 1):
            self.A(f"{op}_dpp v{r}, v{r}, v{r} row_ror:{k} row_mask:0xf bank_mask:0xf")

    def prologue(self):
        A = self.A
        A("s_cmp_ge_u32 s2, 256\ns_cbranch_scc1 L_EXIT")
        A("s_load_dwordx16 s[64:79], s[0:1], 0\ns_load_dwordx4 s[80:83], s[0:1], 64\ns_load_dwordx2 s[84:85], s[0:1], 80")
        if self.stamps:
            for i in range(14): A(f"s_mov_b32 s{86+i}, 0")
            A(f"{self.clk} s[100:101]")
        A("v_lshrrev_b32 v1, 6, v0")
        A(f"s_and_b32 s{XCD}, s2, 7\ns_lshr_b32 s{LOC}, s2, 3")
        A(f"v_readfirstlane_b32 s{W}, v1")
        A(f"s_and_b32 s3, s{LOC}, 1\ns_lshl_b32 s{RB}, s{XCD}, 1\ns_add_u32 s{RB}, s{RB}, s3\ns_lshr_b32 s{CT}, s{LOC}, 1")
        A(f"s_and_b32 s3, s{LOC}, 3\ns_lshl_b32 s{RT64}, s{XCD}, 2\ns_add_u32 s{RT64}, s{RT64}, s3\ns_lshr_b32 s{CB}, s{LOC}, 2")
        A("v_and_b32 v1, 63, v0")
        A("s_waitcnt lgkmcnt(0)")
        if self.stamps: A("s_mov_b32 s86, s100")
        if self.stamps and self.opts.get("dual"): self.stamp(0)
        A(f"s_load_dword s{TAG}, s[84:85], 0")
        self.srd(X, 64, 2621440); self.srd(WQ, 66, 2457600); self.srd(WS, 84, WS_SIZE)
        self.srd(WO, 68, 819200); self.srd(OUT, 80, 2621440); self.srd(WR, 72, 1280)

    def roles(self):
        A = self.A
        A(f"s_mov_b32 s{ROLE}, 0\ns_mov_b32 s{GI}, 0\ns_mov_b32 s60, 1280\ns_mov_b32 s61, 0")
        self.srd(MOE, 78, 0)
        A(f"s_cmp_ge_u32 s{LOC}, 17\ns_cbranch_scc1 L_ROLE_DONE")
        A(f"s_cmp_ge_u32 s{LOC}, 12\ns_cbranch_scc1 L_ROLE_D")
        A(f"s_mov_b32 s{ROLE}, 1\ns_mul_i32 s{GI}, s{XCD}, 12\ns_add_u32 s{GI}, s{GI}, s{LOC}\ns_mov_b32 s60, 3072")
        A(f"s_and_b32 s61, s{W}, 3\ns_mul_i32 s61, s61, {160*3072}")
        A(f"s_cmp_ge_u32 s{W}, 4\ns_cbranch_scc1 L_ROLE_U")
        self.srd(MOE, 74, 640*3072)
        A("s_branch L_ROLE_DONE\nL_ROLE_U:")
        self.srd(MOE, 76, 640*3072)
        A("s_branch L_ROLE_DONE\nL_ROLE_D:")
        A(f"s_mov_b32 s{ROLE}, 2\ns_mul_i32 s{GI}, s{XCD}, 5\ns_add_u32 s{GI}, s{GI}, s{LOC}\ns_sub_u32 s{GI}, s{GI}, 12")
        A(f"s_mul_i32 s61, s{W}, {192*1280}")
        self.srd(MOE, 78, 1536*1280)
        A("L_ROLE_DONE:")
        A(f"s_lshl_b32 s3, s{GI}, 5\ns_add_u32 s61, s61, s3")

    def tag_ready(self):
        self.A(f"s_waitcnt lgkmcnt(0)\ns_add_u32 s{TAG}, s{TAG}, 0x9E3779B9")

    def p1(self):
        A = self.A
        A(f"s_cmp_ge_u32 s{W}, 4\ns_cbranch_scc1 L_P1_LOAD")
        if self.opts.get("pf"):
            A(f"s_cmp_lg_u32 s{W}, 0\ns_cbranch_scc1 L_P1_NOPF")
            A(f"v_lshl_add_u32 v2, v1, 8, s2\nv_lshlrev_b32 v2, 7, v2\ns_mov_b32 s42, {64*256*128}")
            A(f"buffer_load_dword v3, v2, s[{WQ}:{WQ+3}], 0 offen\nbuffer_load_dword v4, v2, s[{WQ}:{WQ+3}], s42 offen")
            A("L_P1_NOPF:")
        A(f"s_cmp_lg_u32 s{ROLE}, 1\ns_cbranch_scc1 L_P1_NOPOI\ns_cmp_lg_u32 s{W}, 0\ns_cbranch_scc1 L_P1_NOPOI")
        A(f"s_lshl_b32 s42, s{GI}, 8\ns_add_u32 s42, s42, {WS_HID}\nv_mov_b32 v2, -1\nv_lshlrev_b32 v3, 2, v1")
        A(f"buffer_store_dword v2, v3, s[{WS}:{WS+3}], s42 offen sc1")
        A("L_P1_NOPOI:")
        self.tag_ready()
        if "pfv" in self.opts: self.pf_setup()
        A(f"s_cmp_eq_u32 s{CT}, 15\ns_cbranch_scc1 L_P1_CDONE")
        A(f"s_cmp_ge_u32 s{CT}, 10\ns_cbranch_scc1 L_P1_V")
        self.p1_compute(True)
        A("s_branch L_P1_FLAG")
        A("L_P1_V:")
        self.p1_compute(False)
        A("L_P1_FLAG:")
        A("s_barrier")
        self.stamp(2)
        A("s_waitcnt vmcnt(0)")
        A(f"s_lshl_b32 s42, s{RB}, 4\ns_add_u32 s42, s42, s{CT}\ns_lshl_b32 s42, s42, 2\ns_add_u32 s42, s42, s{W}\ns_lshl_b32 s42, s42, 7\ns_add_u32 s42, s42, {WS_FLAG1}")
        A(f"v_mov_b32 v2, s{TAG}\nv_mov_b32 v3, 0")
        A("s_mov_b64 exec, 1")
        A(f"buffer_store_dword v2, v3, s[{WS}:{WS+3}], s42 offen sc1")
        A("s_mov_b64 exec, -1")
        self.stamp(3)
        A("s_branch L_P1_END")
        A("L_P1_CDONE:")
        if "pfv" in self.opts: self.pf_issue()
        A("s_barrier")
        A("s_branch L_P1_END")
        A("L_P1_LOAD:")
        self.p1_loader()
        A("L_P1_END:")

    def pf_setup(self):
        A = self.A
        sfx = self.A.label("PF")
        A(f"s_lshl_b32 s50, s{LOC}, 2\ns_add_u32 s50, s50, s{W}")
        A(f"s_cmp_lt_u32 s50, 60\ns_cbranch_scc1 {sfx}_GU\ns_cmp_lt_u32 s50, 108\ns_cbranch_scc1 {sfx}_D")
        self.srd(52, 68, 819200)
        A(f"s_sub_u32 s50, s50, 108\ns_lshl_b32 s50, s50, 6\nv_add_u32 v58, s50, v1\nv_min_u32 v58, 799, v58\ns_mul_i32 s51, s{XCD}, 800\nv_add_u32 v58, s51, v58\nv_lshlrev_b32 v58, 7, v58")
        A(f"s_branch {sfx}_E\n{sfx}_D:")
        self.srd(52, 78, 1536*1280)
        A(f"s_sub_u32 s50, s50, 60\ns_lshl_b32 s50, s50, 5\nv_lshrrev_b32 v58, 1, v1\nv_add_u32 v58, s50, v58\nv_mul_u32_u24 v58, 1280, v58")
        A(f"v_and_b32 v59, 1, v1\nv_lshl_add_u32 v58, v59, 7, v58\ns_mul_i32 s51, s{XCD}, 160\ns_and_b32 s51, s51, 0xffffff80\nv_add_u32 v58, s51, v58")
        A(f"s_branch {sfx}_E\n{sfx}_GU:")
        A(f"s_cmp_lt_u32 s50, 30\ns_cbranch_scc1 {sfx}_G")
        self.srd(52, 76, 640*3072)
        A(f"s_sub_u32 s50, s50, 30\ns_branch {sfx}_GU2\n{sfx}_G:")
        self.srd(52, 74, 640*3072)
        A(f"{sfx}_GU2:")
        assert all((G * 21846) >> 16 == G // 3 for G in range(1920))
        A(f"s_lshl_b32 s50, s50, 6\nv_add_u32 v58, s50, v1\nv_mul_u32_u24 v59, 21846, v58\nv_lshrrev_b32 v59, 16, v59\nv_mul_u32_u24 v60, 3, v59\nv_sub_u32 v58, v58, v60")
        A(f"v_mul_u32_u24 v59, 3072, v59\nv_lshl_add_u32 v58, v58, 7, v59\ns_mul_i32 s51, s{XCD}, 384\nv_add_u32 v58, s51, v58")
        A(f"{sfx}_E:")
    def pf_issue(self):
        self.A("buffer_load_dword v59, v58, s[52:55], 0 offen")

    def p1_compute(self, qk):
        A = self.A
        ACC = 64; CS = 128; SEL = 136; XF = 140; WF = 164
        XA = 188; WA = 192; T = 196
        A(f"s_lshr_b32 s42, s{W}, 1\ns_and_b32 s43, s{W}, 1")
        A(f"v_and_b32 v{T}, 31, v1\nv_lshrrev_b32 v{T+1}, 5, v1")
        A(f"v_bfe_u32 v{T+2}, v1, 1, 3")
        A(f"s_lshl_b32 s44, s42, 13")
        A(f"v_lshl_add_u32 v{T+3}, v{T}, 7, s44")
        for ks in range(4):
            A(f"v_add_u32 v{T+4}, {2*ks}, v{T+1}\nv_xor_b32 v{T+4}, v{T+4}, v{T+2}\nv_lshl_add_u32 v{XA+ks}, v{T+4}, 4, v{T+3}")
        A(f"v_bfe_u32 v{T+2}, v1, 2, 2")
        A(f"v_and_b32 v{T+4}, 3, v1")
        if qk:
            A(f"v_and_b32 v{T+5}, 1, v{T+4}\nv_lshrrev_b32 v{T+6}, 1, v{T+4}")
        else:
            A(f"v_lshrrev_b32 v{T+5}, 1, v{T+4}\nv_and_b32 v{T+6}, 1, v{T+4}")
        A(f"v_bfe_u32 v{T+7}, v1, 4, 1\nv_lshl_add_u32 v{T+5}, v{T+7}, 1, v{T+5}")
        A(f"s_lshl_b32 s44, s43, 3\nv_add_u32 v{T+5}, s44, v{T+5}")
        A(f"v_lshl_add_u32 v{T+7}, v{T+1}, 3, v{T+2}\nv_lshlrev_b32 v{T+7}, 8, v{T+7}")
        A(f"v_lshl_add_u32 v{T+7}, v{T+6}, 3, v{T+7}\nv_add_u32 v{T+7}, {L_WR}, v{T+7}")
        A(f"v_lshlrev_b32 v{T+2}, 2, v{T+2}")
        for j in range(2):
            A(f"v_add_u32 v{T+8}, {4*j}, v{T+5}\nv_xor_b32 v{T+8}, v{T+8}, v{T+2}\nv_lshl_add_u32 v{WA+j}, v{T+8}, 4, v{T+7}")
        A(f"v_lshrrev_b32 v{T+8}, 2, v1\nv_xor_b32 v{T+8}, v{T+8}, v1\nv_bfe_u32 v{T+8}, v{T+8}, 2, 1")
        A(f"v_mov_b32 v{T+9}, 0x3f803f80\nv_cmp_eq_u32 vcc, 0, v{T+8}")
        for q in range(4): A(f"v_cndmask_b32 v{SEL+q}, 0, v{T+9}, vcc")
        SO = T + 10
        if qk:
            A(f"s_mov_b32 s45, {WS_Q}\ns_cmp_ge_u32 s{CT}, 5\ns_cselect_b32 s45, {WS_K - 5*32768}, s45")
            A(f"s_mul_i32 s46, s{RB}, 163840\ns_add_u32 s45, s45, s46\ns_lshl_b32 s46, s{CT}, 15\ns_add_u32 s45, s45, s46")
            A(f"s_lshl_b32 s46, s43, 14\ns_add_u32 s45, s45, s46\ns_lshl_b32 s46, s42, 10\ns_add_u32 s45, s45, s46")
            A(f"v_lshlrev_b32 v{SO}, 4, v{T}\nv_lshl_add_u32 v{SO}, v{T+1}, 11, v{SO}")
        else:
            A(f"s_lshl_b32 s45, s{RB}, 1\ns_add_u32 s45, s45, s42\ns_mul_i32 s45, s45, 81920\ns_add_u32 s45, s45, {WS_V - 10*2048}")
            A(f"s_lshl_b32 s46, s{CT}, 11\ns_add_u32 s45, s45, s46\ns_lshl_b32 s46, s43, 10\ns_add_u32 s45, s45, s46")
            A(f"v_mul_u32_u24 v{SO}, 10240, v{T+1}\nv_lshl_add_u32 v{SO}, v{T}, 4, v{SO}")
        SA = T + 11; SB = T + 12
        A(f"s_lshl_b32 s46, s42, 8\ns_add_u32 s46, s46, {L_MPK}")
        A(f"v_lshl_add_u32 v{SA}, v{T}, 2, s46")
        A(f"v_lshl_add_u32 v{SB}, v{T+1}, 4, s46")
        A(f"v_cmp_gt_u32 s[48:49], 32, v1")

        def reads(n):
            c, ks = divmod(n, 4); s = n % 3; slot = c & 3
            L = []
            for j in range(2):
                for t in range(2):
                    L.append(f"ds_read_b64_tr_b16 v[{WF+8*s+4*j+2*t}:{WF+8*s+4*j+2*t+1}], v{WA+j} offset:{slot*16384+ks*4096+t*1024}")
            for i in range(2):
                L.append(f"ds_read_b128 v[{XF+8*s+4*i}:{XF+8*s+4*i+3}], v{XA+ks} offset:{slot*16384+i*4096}")
            return L
        def mf(n):
            s = n % 3
            L = []
            for j in range(2):
                if self.opts.get("nocs") and n > 0: continue
                c = "0" if n == 0 else vr(CS+4*j, 4)
                L.append(f"v_mfma_f32_16x16x32_bf16 {vr(CS+4*j,4)}, {vr(SEL,4)}, {vr(WF+8*s+4*j,4)}, {c}")
            for i in range(2):
                for j in range(2):
                    a = ACC + 16*(2*i+j); c = "0" if n == 0 else vr(a, 16)
                    xf = vr(XF+8*s+4*i, 4); wf = vr(WF+8*s+4*j, 4)
                    p, q = (wf, xf) if qk else (xf, wf)
                    L.append(f"v_mfma_f32_32x32x16_bf16 {vr(a,16)}, {p}, {q}, {c}")
            return L
        A("s_barrier")
        self.stamp(1)
        for r in reads(0) + reads(1): A(r)
        ahead = self.opts.get("ahead", 2)
        E = 1
        for n in range(40):
            if n % 4 == 2:
                A("s_waitcnt lgkmcnt(0)" if (ahead == 3 or n == 38) else "s_waitcnt lgkmcnt(6)")
                A("s_barrier")
            elif n < 39: A("s_waitcnt lgkmcnt(6)")
            if n < 38:
                rd = reads(n + 2)
            elif n == 38:
                rd = [f"ds_read_b32 v{XF+8*E}, v{SA}", f"ds_read_b32 v{XF+8*E+4}, v{SA} offset:128"]
                if qk:
                    rd += [f"ds_read_b32 v{T+14}, v{SA} offset:512", f"ds_read_b32 v{T+16}, v{SA} offset:640"]
                else:
                    for i in range(2):
                        for a in range(4):
                            rd.append(f"ds_read_b128 v[{8+16*i+4*a}:{8+16*i+4*a+3}], v{SB} offset:{512+i*128+a*32}")
            else: rd = []
            if self.opts.get("pfv") == n: self.pf_issue()
            m = mf(n)
            if self.opts.get("nomfma") and n > 0: m = []
            if self.opts.get("nolds") and n < 38: rd = []
            k = 0
            for x in m:
                A(x)
                for _ in range(2):
                    if k < len(rd): A(rd[k]); k += 1
            while k < len(rd): A(rd[k]); k += 1
        XF += 8*E; WF += 8*E
        for j in range(2):
            f = WF + 4*j
            A(f"v_cvt_pk_bf16_f32 v{f}, v{CS+4*j}, v{CS+4*j}")
            A(f"v_and_b32 v{T+8}, 0xffff0000, v{f}\nv_sub_f32 v{T+8}, v{CS+4*j}, v{T+8}\nv_cvt_pk_bf16_f32 v{f+1}, v{T+8}, v{T+8}")
            A(f"v_mov_b32 v{f+2}, 0\nv_mov_b32 v{f+3}, 0")
        A("s_waitcnt lgkmcnt(0)")
        for i in range(2):
            f = XF + 4*i
            A(f"v_cndmask_b32 v{f}, 0, v{f}, s[48:49]\nv_mov_b32 v{f+2}, 0\nv_mov_b32 v{f+3}, 0\nv_mov_b32 v{f+1}, v{f}")
        if qk:
            A(f"s_cmp_ge_u32 s{CT}, 5\ns_cselect_b32 s46, 1.0, {hex(f2u(QSCALE))}")
            A(f"v_mul_f32 v{T+14}, s46, v{T+14}\nv_mul_f32 v{T+16}, s46, v{T+16}")
        for i in range(2):
            for j in range(2):
                a = ACC + 16*(2*i+j)
                xf = vr(XF+4*i, 4); wf = vr(WF+4*j, 4)
                p, q = (wf, xf) if qk else (xf, wf)
                A(f"v_mfma_f32_32x32x16_bf16 {vr(a,16)}, {p}, {q}, {vr(a,16)}")
        PK = 40
        for i in range(2):
            for j in range(2):
                a = ACC + 16*(2*i+j); pk = PK + 8*((2*i+j) & 1)
                for e in range(8):
                    if qk:
                        A(f"v_pk_mul_f32 v[{a+2*e}:{a+2*e+1}], v[{a+2*e}:{a+2*e+1}], v[{T+14+2*i}:{T+15+2*i}] op_sel_hi:[1,0]")
                    else:
                        A(f"v_pk_mul_f32 v[{a+2*e}:{a+2*e+1}], v[{a+2*e}:{a+2*e+1}], v[{8+16*i+2*e}:{9+16*i+2*e}]")
                for e in range(8):
                    A(f"v_cvt_pk_bf16_f32 v{pk+e}, v{a+2*e}, v{a+2*e+1}")
                for r2 in range(2):
                    if qk:
                        off = (4*j + 2*r2) * 2048; imm = i * 512
                    else:
                        off = i * 40960 + r2 * 20480; imm = j * 512
                    A(f"s_add_u32 s47, s45, {off}")
                    A(f"buffer_store_dwordx4 v[{pk+4*r2}:{pk+4*r2+3}], v{SO}, s[{WS}:{WS+3}], s47 offen offset:{imm} sc1")

    def p1_loader(self):
        A = self.A
        D = 8; U = 20; T = 44; VX = 56; VW = 58; VS = 59
        A(f"s_sub_u32 s42, s{W}, 4")
        A(f"s_lshl_b32 s43, s{RB}, 7\ns_lshl_b32 s44, s{CT}, 3\ns_add_u32 s43, s43, s44\ns_lshl_b32 s44, s42, 1\ns_add_u32 s50, s43, s44\ns_mul_i32 s43, s50, 1280")
        A(f"v_lshrrev_b32 v{T}, 5, v1\nv_and_b32 v{T+1}, 31, v1\nv_mul_u32_u24 v{T+2}, 1280, v{T}\nv_lshl_add_u32 v{T+2}, v{T+1}, 3, v{T+2}")
        A(f"v_mov_b32 v{VS+1}, v{T+2}\ns_mov_b32 s59, s43")
        def sloads():
            for i in range(5):
                A(f"buffer_load_dwordx2 v[{D+2*i}:{D+2*i+1}], v{VS+1}, s[{X}:{X+3}], s59 offen offset:{i*256}")
        slate = self.opts.get("slate", 0)
        if slate == 0: sloads()
        A(f"v_add_u32 v{VS}, s50, v{T}\nv_lshlrev_b32 v{VS}, 4, v{VS}")
        A(f"s_cmp_eq_u32 s{CT}, 15\ns_cbranch_scc1 L_P1_SPARE")
        A(f"v_lshrrev_b32 v{T}, 3, v1\nv_mul_u32_u24 v{T}, 1280, v{T}\nv_and_b32 v{T+1}, 7, v1\nv_lshrrev_b32 v{T+2}, 4, v1")
        A(f"v_xor_b32 v{T+3}, v{T+1}, v{T+2}\nv_lshl_add_u32 v{VX}, v{T+3}, 4, v{T}")
        A(f"v_xor_b32 v{T+3}, 4, v{T+3}\nv_lshl_add_u32 v{VX+1}, v{T+3}, 4, v{T}")
        A(f"v_and_b32 v{T+1}, 15, v1\nv_lshlrev_b32 v{T+3}, 2, v{T+2}\nv_xor_b32 v{T+1}, v{T+1}, v{T+3}\nv_mul_u32_u24 v{T}, 3840, v{T+2}\nv_lshl_add_u32 v{VW}, v{T+1}, 4, v{T}")
        A(f"s_lshl_b32 s43, s{RB}, 2\ns_add_u32 s43, s43, s42\ns_mul_i32 s51, s43, {32*1280}")
        A(f"s_mul_i32 s52, s42, {16*3840}\ns_lshl_b32 s43, s{CT}, 8\ns_add_u32 s52, s52, s43")
        A(f"s_lshl_b32 s53, s42, 12")
        R = self.opts.get("rot", 10)
        if R == 1: A("s_mov_b32 s54, 0")
        else:
            mg = (256 + R - 1) // R
            assert all((v * mg) >> 8 == v // R for v in range(32))
            A(f"s_add_u32 s54, s{RB}, s{CT}\ns_mul_i32 s43, s54, {mg}\ns_lshr_b32 s43, s43, 8\ns_mul_i32 s43, s43, {R}\ns_sub_u32 s54, s54, s43")
            if self.opts.get("rotmul"): A(f"s_mul_i32 s54, s54, {self.opts['rotmul']}")
        def chunk(c):
            slot = c & 3
            A(f"s_lshl_b32 s43, s54, 7\ns_add_u32 s55, s51, s43\ns_mul_i32 s43, s54, 245760\ns_add_u32 s56, s52, s43")
            for i in range(4):
                A(f"s_add_u32 m0, s53, {L_XR + slot*16384 + i*1024}\ns_add_u32 s43, s55, {i*10240}")
                A(f"buffer_load_dwordx4 v{VX+(i&1)}, s[{X}:{X+3}], s43 offen lds")
                A(f"s_add_u32 m0, s53, {L_WR + slot*16384 + i*1024}\ns_add_u32 s43, s56, {i*15360}")
                A(f"buffer_load_dwordx4 v{VW}, s[{WQ}:{WQ+3}], s43 offen lds")
            A("s_add_u32 s54, s54, 1\ns_cmp_eq_u32 s54, 10\ns_cselect_b32 s54, 0, s54")
        def stats():
            for i in range(10):
                A(f"v_lshlrev_b32 v{U+2*i}, 16, v{D+i}\nv_and_b32 v{U+2*i+1}, 0xffff0000, v{D+i}")
            A(f"v_add_f32 v{T}, v{U}, v{U+1}")
            for i in range(2, 20): A(f"v_add_f32 v{T}, v{T}, v{U+i}")
            self.rowred(T); self.allred16([T], [T+1])
            A(f"v_mul_f32 v{T}, {hex(f2u(-1.0/640))}, v{T}")
            for i in range(20): A(f"v_add_f32 v{U+i}, v{U+i}, v{T}")
            A(f"v_mul_f32 v{T+2}, v{U}, v{U}")
            for i in range(1, 20): A(f"v_fmac_f32 v{T+2}, v{U+i}, v{U+i}")
            self.rowred(T+2); self.allred16([T+2], [T+1])
            A(f"v_mov_b32 v{T+1}, {hex(f2u(1e-5))}\nv_fmac_f32 v{T+1}, {hex(f2u(1.0/640))}, v{T+2}\nv_rsq_f32 v{T+5}, v{T+1}")
            A(f"v_cvt_pk_bf16_f32 v{T+3}, v{T}, v{T}\nv_and_b32 v{T+3}, 0xffff0000, v{T+3}\nv_sub_f32 v{T+3}, v{T}, v{T+3}\nv_cvt_pk_bf16_f32 v{T+4}, v{T}, v{T+3}")
            A(f"v_mov_b32 v{T+6}, v{T}\nv_mov_b32 v{T+7}, s{TAG}")
            A(f"s_mov_b32 s43, {WS_STAT1}\ns_mov_b32 exec_lo, 1\ns_mov_b32 exec_hi, 1")
            A(f"buffer_store_dwordx4 v[{T+4}:{T+7}], v{VS}, s[{WS}:{WS+3}], s43 offen sc1")
            A("s_mov_b64 exec, -1")
        ahead = self.opts.get("ahead", 2)
        npro = ahead
        q = [("S", 5)] if slate == 0 else []
        for c in range(npro):
            chunk(c); q.append((c, 8))
            if slate == c + 1: sloads(); q.append(("S", 5))
        self.tag_ready()
        sdone = False
        PV = 8
        for c in range(10):
            i = [g for g, _ in q].index(c)
            A(f"s_waitcnt vmcnt({sum(n for _, n in q[i+1:])})\ns_barrier")
            nx = c + ahead
            if nx < 10 and nx >= npro:
                chunk(nx); q.append((nx, 8))
            if not sdone and [g for g, _ in q].index("S") < i + (1 if slate == 0 else 0) + (slate == 0):
                sdone = True
                stats(); q.append(("ST", 1))
                A(f"s_lshl_b32 s43, s{RB}, 2\ns_add_u32 s43, s43, s42\ns_lshl_b32 s57, s43, 9\ns_add_u32 s57, s57, {WS_STAT1}")
                A(f"v_and_b32 v{VS}, 31, v1\nv_lshlrev_b32 v{T+9}, 2, v{VS}\nv_lshlrev_b32 v{VS}, 4, v{VS}")
                A(f"s_lshl_b32 s43, s42, 7\ns_add_u32 s43, s43, {L_MPK}\nv_add_u32 v{T+9}, s43, v{T+9}")
            if c == 7:
                A(f"buffer_load_dwordx4 v[{PV}:{PV+3}], v{VS}, s[{WS}:{WS+3}], s57 offen sc1"); q.append(("P", 1))
        A(f"s_mov_b32 s58, {SPIN}")
        A("L_P1_SPOLL:\ns_waitcnt vmcnt(0)")
        A(f"v_cmp_ne_u32 vcc, s{TAG}, v{PV+3}\ns_cbranch_vccz L_P1_SOK")
        A(f"buffer_load_dwordx4 v[{PV}:{PV+3}], v{VS}, s[{WS}:{WS+3}], s57 offen sc1")
        self.spin(58, "L_P1_SPOLL")
        A("s_waitcnt vmcnt(0)")
        A("L_P1_SOK:")
        A(f"ds_write_b32 v{T+9}, v{PV}\nds_write_b32 v{T+9}, v{PV+1} offset:512")
        A("s_waitcnt lgkmcnt(0)\ns_barrier")
        A("s_branch L_P1_LDONE")
        A("L_P1_SPARE:")
        if slate: sloads()
        self.tag_ready()
        A("s_waitcnt vmcnt(0)")
        stats()
        A("L_P1_LDONE:")
        A("s_barrier")

    def build(self):
        A = self.A
        import gen_p2
        self.prologue()
        self.roles()
        self.p1()
        if self.stop != "p1":
            gen_p2.p2(self)
            if self.stop != "p2":
                import gen_p3
                gen_p3.p3(self)
        self.finish()
        body, npad = fix_hazards(A.lines, verbose=self.opts.get("verbose"))
        hdr = open(f"cdna_kernels/{NAME}.s.ref").read().split("\n")
        top = [l for l in hdr if l.startswith(";   offset") or l.startswith("; Kernarg")]
        out = top + ["; @launch grid=(256,1,1) block=(512,1,1) lds=163840",
                     '.amdgcn_target "amdgcn-amd-amdhsa--gfx950"', ".text", f".globl {KN}", ".p2align 8",
                     f".type {KN},@function", f"{KN}:"]
        out += [l if l.endswith(":") else "    " + l for l in body]
        out += ['.section .rodata,"a"', ".p2align 6", f".amdhsa_kernel {KN}",
                "  .amdhsa_next_free_vgpr 256", "  .amdhsa_next_free_sgpr 102", "  .amdhsa_accum_offset 256",
                "  .amdhsa_group_segment_fixed_size 0", "  .amdhsa_kernarg_size 88", "  .amdhsa_user_sgpr_count 2",
                "  .amdhsa_user_sgpr_kernarg_segment_ptr 1", "  .amdhsa_system_sgpr_workgroup_id_x 1", ".end_amdhsa_kernel", ""]
        return "\n".join(out), npad

if __name__ == "__main__":
    import argparse
    ap = argparse.ArgumentParser()
    ap.add_argument("-o", default=f"cdna_kernels/{NAME}.s")
    ap.add_argument("--stamps", action="store_true")
    ap.add_argument("--stop", default=None)
    ap.add_argument("-v", action="store_true")
    ap.add_argument("--opt", action="append", default=[])
    a = ap.parse_args()
    opts = {"verbose": a.v}
    for o in a.opt:
        k, _, v = o.partition("=")
        opts[k] = int(v) if v.lstrip("-").isdigit() else (v or True)
    g = Gen(stop=a.stop, stamps=a.stamps, opts=opts)
    txt, npad = g.build()
    open(a.o, "w").write(txt)
    print(f"wrote {a.o}: {txt.count(chr(10))} lines, {npad} pad states")
```

```python
import sys, math
sys.path.insert(0, "work")
from asmlib import *

NAME = "sequential_preLN__sliding_block__moe_arch_mod__prompt"
KN = NAME + "_kernel"

WS_STAT1 = 0x10000
WS_FLAG1 = 0x20000
WS_FLAG2 = 0x40000
WS_PART  = 0x80000
WS_KEYS  = 0xC0000
WS_STAT2 = 0xC4000
WS_TOK2  = 0xD0000
WS_HID   = 0xF0000
WS_Q = 0x100000
WS_K = 0x400000
WS_V = 0x700000
WS_O = 0xA00000
WS_H = 0xD00000
WS_STAMP = 0x1000000
WS_SIZE = 0x1100000

L_XR = 0
L_WR = 65536
L_MPK = 131072
L_RSTD = 131584
L_WO = 0
L_K = 102400
L_V = 133120
L_PATCH = 102400
PATCH = 7680

X, WQ, WO, WS, OUT, MOE, WR = 4, 8, 12, 16, 20, 24, 28
TAG, W, XCD, LOC, RB, CT, RT64, CB, ROLE, GI = 32, 33, 34, 35, 36, 37, 38, 39, 40, 41
SPIN = 50000
QSCALE = (20 ** -0.5) * math.log2(math.e)

def f2u(x):
    import struct
    return struct.unpack("<I", struct.pack("<f", x))[0]

class Gen:
    def __init__(self, stop=None, stamps=False, opts=None):
        self.A = Asm()
        self.stop = stop
        self.stamps = stamps
        self.opts = opts or {}
        self.nstamp = 0
        self.clk = 's_memtime' if self.opts.get('cyc') else 's_memrealtime'

    def stamp(self, idx):
        if not self.stamps: return
        A = self.A
        if self.opts.get("dual"):
            if idx == 13: idx = 6
            A(f"s_memrealtime s[100:101]\ns_waitcnt lgkmcnt(0)\ns_mov_b32 s{86+idx}, s100")
            A(f"s_memtime s[100:101]\ns_waitcnt lgkmcnt(0)\ns_mov_b32 s{93+idx}, s100")
            return
        A(f"{self.clk} s[100:101]\ns_waitcnt lgkmcnt(0)\ns_mov_b32 s{86+idx}, s100")

    def finish(self):
        A = self.A
        A("L_END:")
        if self.opts.get("cal"):
            A(f"s_cmp_lg_u32 s{W}, 0\ns_cbranch_scc1 L_EXIT")
            A(f"s_add_u32 s98, s98, {self.opts['cal']*100}\nL_CAL:\ns_memrealtime s[100:101]\ns_waitcnt lgkmcnt(0)\ns_sub_u32 s42, s100, s98\ns_cmp_lt_i32 s42, 0\ns_cbranch_scc1 L_CAL")
        if self.stamps:
            self.stamp(13)
            A("s_waitcnt vmcnt(0)")
            A("s_mov_b64 exec, -1")
            A(f"s_lshl_b32 s42, s2, 3\ns_add_u32 s42, s42, s{W}\ns_lshl_b32 s42, s42, 6\ns_add_u32 s42, s42, {WS_STAMP}")
            A("v_mov_b32 v1, 0")
            for i in range(14):
                A(f"v_writelane_b32 v1, s{86+i}, {i}")
            A("v_and_b32 v2, 63, v0\nv_lshlrev_b32 v3, 2, v2\nv_cmp_gt_u32 vcc, 16, v2\ns_and_saveexec_b64 s[44:45], vcc")
            if self.opts.get("dbg"):
                A("s_not_b32 s43, s86\nv_writelane_b32 v1, s43, 14")
                A(f"buffer_store_dword v1, v3, s[{WS}:{WS+3}], s42 offen sc1")
                A(f"s_cmp_lg_u32 s2, 96\ns_cbranch_scc1 L_EXIT\ns_cmp_lg_u32 s{W}, 0\ns_cbranch_scc1 L_EXIT")
                self.srd(48, 82, 256)
                A("s_add_u32 s98, s99, 1500\nL_DW:\ns_memrealtime s[100:101]\ns_waitcnt lgkmcnt(0)\ns_sub_u32 s42, s100, s98\ns_cmp_lt_i32 s42, 0\ns_cbranch_scc1 L_DW")
                A(f"s_mov_b32 s42, {WS_STAMP}\nv_mov_b32 v1, 0\nL_DL:")
                for i in range(8): A(f"buffer_load_dword v{8+i}, v3, s[{WS}:{WS+3}], s42 offen offset:{64*i} sc1")
                A("s_waitcnt vmcnt(0)")
                lo, hi = {1: (0, 8), 2: (0, 4), 3: (4, 8)}[self.opts["dbg"]]
                for i in range(lo, hi): A(f"v_max_u32 v1, v1, v{8+i}")
                A(f"s_add_u32 s42, s42, 512\ns_cmp_lt_u32 s42, {WS_STAMP + 256*512}\ns_cbranch_scc1 L_DL")
                A("buffer_store_dword v1, v3, s[48:51], 0 offen")
            else:
                A(f"buffer_store_dword v1, v3, s[{WS}:{WS+3}], s42 offen")
        A("L_EXIT:")
        A("s_endpgm")

    def srd(self, d, p, size):
        self.A(f"s_mov_b32 s{d}, s{p}\ns_mov_b32 s{d+1}, s{p+1}\ns_mov_b32 s{d+2}, {size}\ns_mov_b32 s{d+3}, 0x20000")

    def spin(self, cnt, lab):
        self.A(f"s_sub_u32 s{cnt}, s{cnt}, 1\ns_cmp_lg_u32 s{cnt}, 0\ns_cbranch_scc1 {lab}")

    def allred32(self, regs, tmp, op="v_add_f32"):
        A = self.A
        for r, t in zip(regs, tmp): A(f"v_mov_b32 v{t}, v{r}")
        for r, t in zip(regs, tmp): A(f"v_permlane32_swap_b32 v{r}, v{t}")
        for r, t in zip(regs, tmp): A(f"{op} v{r}, v{r}, v{t}")
    def allred16(self, regs, tmp, op="v_add_f32"):
        A = self.A
        for r, t in zip(regs, tmp): A(f"v_mov_b32 v{t}, v{r}")
        for r, t in zip(regs, tmp): A(f"v_permlane16_swap_b32 v{r}, v{t}")
        for r, t in zip(regs, tmp): A(f"{op} v{r}, v{r}, v{t}")
    def rowred(self, r, op="v_add_f32"):
        for k in (8, 4, 2, 1):
            self.A(f"{op}_dpp v{r}, v{r}, v{r} row_ror:{k} row_mask:0xf bank_mask:0xf")

    def prologue(self):
        A = self.A
        A("s_cmp_ge_u32 s2, 256\ns_cbranch_scc1 L_EXIT")
        A("s_load_dwordx16 s[64:79], s[0:1], 0\ns_load_dwordx4 s[80:83], s[0:1], 64\ns_load_dwordx2 s[84:85], s[0:1], 80")
        if self.stamps:
            for i in range(14): A(f"s_mov_b32 s{86+i}, 0")
            A(f"{self.clk} s[100:101]")
        if self.opts.get("cal"): A("s_memrealtime s[98:99]")
        A("v_lshrrev_b32 v1, 6, v0")
        A(f"s_and_b32 s{XCD}, s2, 7\ns_lshr_b32 s{LOC}, s2, 3")
        A(f"v_readfirstlane_b32 s{W}, v1")
        A(f"s_and_b32 s3, s{LOC}, 1\ns_lshl_b32 s{RB}, s{XCD}, 1\ns_add_u32 s{RB}, s{RB}, s3\ns_lshr_b32 s{CT}, s{LOC}, 1")
        A(f"s_and_b32 s3, s{LOC}, 3\ns_lshl_b32 s{RT64}, s{XCD}, 2\ns_add_u32 s{RT64}, s{RT64}, s3\ns_lshr_b32 s{CB}, s{LOC}, 2")
        A("v_and_b32 v1, 63, v0")
        A("s_waitcnt lgkmcnt(0)")
        if self.stamps: A("s_mov_b32 s86, s100")
        if self.stamps and self.opts.get("dual"): self.stamp(0)
        A(f"s_load_dword s{TAG}, s[84:85], 0")
        self.srd(X, 64, 2621440); self.srd(WQ, 66, 2457600); self.srd(WS, 84, WS_SIZE)
        self.srd(WO, 68, 819200); self.srd(OUT, 80, 2621440); self.srd(WR, 72, 1280)

    def roles(self):
        A = self.A
        A(f"s_mov_b32 s{ROLE}, 0\ns_mov_b32 s{GI}, 0\ns_mov_b32 s60, 1280\ns_mov_b32 s61, 0")
        self.srd(MOE, 78, 0)
        A(f"s_cmp_ge_u32 s{LOC}, 17\ns_cbranch_scc1 L_ROLE_DONE")
        A(f"s_cmp_ge_u32 s{LOC}, 12\ns_cbranch_scc1 L_ROLE_D")
        A(f"s_mov_b32 s{ROLE}, 1\ns_mul_i32 s{GI}, s{XCD}, 12\ns_add_u32 s{GI}, s{GI}, s{LOC}\ns_mov_b32 s60, 3072")
        A(f"s_and_b32 s61, s{W}, 3\ns_mul_i32 s61, s61, {160*3072}")
        A(f"s_cmp_ge_u32 s{W}, 4\ns_cbranch_scc1 L_ROLE_U")
        self.srd(MOE, 74, 640*3072)
        A("s_branch L_ROLE_DONE\nL_ROLE_U:")
        self.srd(MOE, 76, 640*3072)
        A("s_branch L_ROLE_DONE\nL_ROLE_D:")
        A(f"s_mov_b32 s{ROLE}, 2\ns_mul_i32 s{GI}, s{XCD}, 5\ns_add_u32 s{GI}, s{GI}, s{LOC}\ns_sub_u32 s{GI}, s{GI}, 12")
        A(f"s_mul_i32 s61, s{W}, {192*1280}")
        self.srd(MOE, 78, 1536*1280)
        A("L_ROLE_DONE:")
        A(f"s_lshl_b32 s3, s{GI}, 5\ns_add_u32 s61, s61, s3")

    def tag_ready(self):
        self.A(f"s_waitcnt lgkmcnt(0)\ns_add_u32 s{TAG}, s{TAG}, 0x9E3779B9")

    def p1(self):
        A = self.A
        A(f"s_cmp_ge_u32 s{W}, 4\ns_cbranch_scc1 L_P1_LOAD")
        if self.opts.get("pf"):
            A(f"s_cmp_lg_u32 s{W}, 0\ns_cbranch_scc1 L_P1_NOPF")
            A(f"v_lshl_add_u32 v2, v1, 8, s2\nv_lshlrev_b32 v2, 7, v2\ns_mov_b32 s42, {64*256*128}")
            A(f"buffer_load_dword v3, v2, s[{WQ}:{WQ+3}], 0 offen\nbuffer_load_dword v4, v2, s[{WQ}:{WQ+3}], s42 offen")
            A("L_P1_NOPF:")
        if self.opts.get("cpf", 1):
            A(f"s_and_b32 s42, s{LOC}, 3\ns_cmp_lg_u32 s42, s{W}\ns_cbranch_scc1 L_P1_NOCPF")
            A(f"s_getpc_b64 s[44:45]\nL_PC:\ns_mov_b32 s46, L_EXIT-L_PC\ns_mov_b32 s47, 0x20000\ns_lshl_b32 s42, s42, 13\nv_lshlrev_b32 v2, 7, v1")
            A("buffer_load_dword v255, v2, s[44:47], s42 offen")
            A("L_P1_NOCPF:")
        A(f"s_cmp_lg_u32 s{ROLE}, 1\ns_cbranch_scc1 L_P1_NOPOI\ns_cmp_lg_u32 s{W}, 0\ns_cbranch_scc1 L_P1_NOPOI")
        A(f"s_lshl_b32 s42, s{GI}, 8\ns_add_u32 s42, s42, {WS_HID}\nv_mov_b32 v2, -1\nv_lshlrev_b32 v3, 2, v1")
        A(f"buffer_store_dword v2, v3, s[{WS}:{WS+3}], s42 offen sc1")
        A("L_P1_NOPOI:")
        self.tag_ready()
        if "pfv" in self.opts: self.pf_setup()
        A(f"s_cmp_eq_u32 s{CT}, 15\ns_cbranch_scc1 L_P1_CDONE")
        A(f"s_cmp_ge_u32 s{CT}, 10\ns_cbranch_scc1 L_P1_V")
        self.p1_compute(True)
        A("s_branch L_P1_FLAG")
        A("L_P1_V:")
        self.p1_compute(False)
        A("L_P1_FLAG:")
        A("s_barrier")
        self.stamp(2)
        A("s_waitcnt vmcnt(0)")
        A(f"s_lshl_b32 s42, s{RB}, 4\ns_add_u32 s42, s42, s{CT}\ns_lshl_b32 s42, s42, 2\ns_add_u32 s42, s42, s{W}\ns_lshl_b32 s42, s42, 7\ns_add_u32 s42, s42, {WS_FLAG1}")
        A(f"v_mov_b32 v2, s{TAG}\nv_mov_b32 v3, 0")
        A("s_mov_b64 exec, 1")
        A(f"buffer_store_dword v2, v3, s[{WS}:{WS+3}], s42 offen sc1")
        A("s_mov_b64 exec, -1")
        self.stamp(3)
        A("s_branch L_P1_END")
        A("L_P1_CDONE:")
        if "pfv" in self.opts: self.pf_issue()
        A("s_barrier")
        A("s_branch L_P1_END")
        A("L_P1_LOAD:")
        self.p1_loader()
        A("L_P1_END:")

    def pf_setup(self):
        A = self.A
        sfx = self.A.label("PF")
        A(f"s_lshl_b32 s50, s{LOC}, 2\ns_add_u32 s50, s50, s{W}")
        A(f"s_cmp_lt_u32 s50, 60\ns_cbranch_scc1 {sfx}_GU\ns_cmp_lt_u32 s50, 108\ns_cbranch_scc1 {sfx}_D")
        self.srd(52, 68, 819200)
        A(f"s_sub_u32 s50, s50, 108\ns_lshl_b32 s50, s50, 6\nv_add_u32 v58, s50, v1\nv_min_u32 v58, 799, v58\ns_mul_i32 s51, s{XCD}, 800\nv_add_u32 v58, s51, v58\nv_lshlrev_b32 v58, 7, v58")
        A(f"s_branch {sfx}_E\n{sfx}_D:")
        self.srd(52, 78, 1536*1280)
        A(f"s_sub_u32 s50, s50, 60\ns_lshl_b32 s50, s50, 5\nv_lshrrev_b32 v58, 1, v1\nv_add_u32 v58, s50, v58\nv_mul_u32_u24 v58, 1280, v58")
        A(f"v_and_b32 v59, 1, v1\nv_lshl_add_u32 v58, v59, 7, v58\ns_mul_i32 s51, s{XCD}, 160\ns_and_b32 s51, s51, 0xffffff80\nv_add_u32 v58, s51, v58")
        A(f"s_branch {sfx}_E\n{sfx}_GU:")
        A(f"s_cmp_lt_u32 s50, 30\ns_cbranch_scc1 {sfx}_G")
        self.srd(52, 76, 640*3072)
        A(f"s_sub_u32 s50, s50, 30\ns_branch {sfx}_GU2\n{sfx}_G:")
        self.srd(52, 74, 640*3072)
        A(f"{sfx}_GU2:")
        assert all((G * 21846) >> 16 == G // 3 for G in range(1920))
        A(f"s_lshl_b32 s50, s50, 6\nv_add_u32 v58, s50, v1\nv_mul_u32_u24 v59, 21846, v58\nv_lshrrev_b32 v59, 16, v59\nv_mul_u32_u24 v60, 3, v59\nv_sub_u32 v58, v58, v60")
        A(f"v_mul_u32_u24 v59, 3072, v59\nv_lshl_add_u32 v58, v58, 7, v59\ns_mul_i32 s51, s{XCD}, 384\nv_add_u32 v58, s51, v58")
        A(f"{sfx}_E:")
    def pf_issue(self):
        self.A("buffer_load_dword v59, v58, s[52:55], 0 offen")

    def p1_compute(self, qk):
        A = self.A
        ACC = 64; CS = 128; SEL = 136; XF = 140; WF = 164
        XA = 188; WA = 192; T = 196
        A(f"s_lshr_b32 s42, s{W}, 1\ns_and_b32 s43, s{W}, 1")
        A(f"v_and_b32 v{T}, 31, v1\nv_lshrrev_b32 v{T+1}, 5, v1")
        A(f"v_bfe_u32 v{T+2}, v1, 1, 3")
        A(f"s_lshl_b32 s44, s42, 13")
        A(f"v_lshl_add_u32 v{T+3}, v{T}, 7, s44")
        for ks in range(4):
            A(f"v_add_u32 v{T+4}, {2*ks}, v{T+1}\nv_xor_b32 v{T+4}, v{T+4}, v{T+2}\nv_lshl_add_u32 v{XA+ks}, v{T+4}, 4, v{T+3}")
        A(f"v_bfe_u32 v{T+2}, v1, 2, 2")
        A(f"v_and_b32 v{T+4}, 3, v1")
        if qk:
            A(f"v_and_b32 v{T+5}, 1, v{T+4}\nv_lshrrev_b32 v{T+6}, 1, v{T+4}")
        else:
            A(f"v_lshrrev_b32 v{T+5}, 1, v{T+4}\nv_and_b32 v{T+6}, 1, v{T+4}")
        A(f"v_bfe_u32 v{T+7}, v1, 4, 1\nv_lshl_add_u32 v{T+5}, v{T+7}, 1, v{T+5}")
        A(f"s_lshl_b32 s44, s43, 3\nv_add_u32 v{T+5}, s44, v{T+5}")
        A(f"v_lshl_add_u32 v{T+7}, v{T+1}, 3, v{T+2}\nv_lshlrev_b32 v{T+7}, 8, v{T+7}")
        A(f"v_lshl_add_u32 v{T+7}, v{T+6}, 3, v{T+7}\nv_add_u32 v{T+7}, {L_WR}, v{T+7}")
        A(f"v_lshlrev_b32 v{T+2}, 2, v{T+2}")
        for j in range(2):
            A(f"v_add_u32 v{T+8}, {4*j}, v{T+5}\nv_xor_b32 v{T+8}, v{T+8}, v{T+2}\nv_lshl_add_u32 v{WA+j}, v{T+8}, 4, v{T+7}")
        A(f"v_lshrrev_b32 v{T+8}, 2, v1\nv_xor_b32 v{T+8}, v{T+8}, v1\nv_bfe_u32 v{T+8}, v{T+8}, 2, 1")
        A(f"v_mov_b32 v{T+9}, 0x3f803f80\nv_cmp_eq_u32 vcc, 0, v{T+8}")
        for q in range(4): A(f"v_cndmask_b32 v{SEL+q}, 0, v{T+9}, vcc")
        SO = T + 10
        if qk:
            A(f"s_mov_b32 s45, {WS_Q}\ns_cmp_ge_u32 s{CT}, 5\ns_cselect_b32 s45, {WS_K - 5*32768}, s45")
            A(f"s_mul_i32 s46, s{RB}, 163840\ns_add_u32 s45, s45, s46\ns_lshl_b32 s46, s{CT}, 15\ns_add_u32 s45, s45, s46")
            A(f"s_lshl_b32 s46, s43, 14\ns_add_u32 s45, s45, s46\ns_lshl_b32 s46, s42, 10\ns_add_u32 s45, s45, s46")
            A(f"v_lshlrev_b32 v{SO}, 4, v{T}\nv_lshl_add_u32 v{SO}, v{T+1}, 11, v{SO}")
        else:
            A(f"s_lshl_b32 s45, s{RB}, 1\ns_add_u32 s45, s45, s42\ns_mul_i32 s45, s45, 81920\ns_add_u32 s45, s45, {WS_V - 10*2048}")
            A(f"s_lshl_b32 s46, s{CT}, 11\ns_add_u32 s45, s45, s46\ns_lshl_b32 s46, s43, 10\ns_add_u32 s45, s45, s46")
            A(f"v_mul_u32_u24 v{SO}, 10240, v{T+1}\nv_lshl_add_u32 v{SO}, v{T}, 4, v{SO}")
        SA = T + 11; SB = T + 12
        A(f"s_lshl_b32 s46, s42, 8\ns_add_u32 s46, s46, {L_MPK}")
        A(f"v_lshl_add_u32 v{SA}, v{T}, 2, s46")
        A(f"v_lshl_add_u32 v{SB}, v{T+1}, 4, s46")
        A(f"v_cmp_gt_u32 s[48:49], 32, v1")

        def reads(n):
            c, ks = divmod(n, 4); s = n % 3; slot = c & 3
            L = []
            for j in range(2):
                for t in range(2):
                    L.append(f"ds_read_b64_tr_b16 v[{WF+8*s+4*j+2*t}:{WF+8*s+4*j+2*t+1}], v{WA+j} offset:{slot*16384+ks*4096+t*1024}")
            for i in range(2):
                L.append(f"ds_read_b128 v[{XF+8*s+4*i}:{XF+8*s+4*i+3}], v{XA+ks} offset:{slot*16384+i*4096}")
            return L
        def mf(n):
            s = n % 3
            L = []
            for j in range(2):
                if self.opts.get("nocs") and n > 0: continue
                c = "0" if n == 0 else vr(CS+4*j, 4)
                L.append(f"v_mfma_f32_16x16x32_bf16 {vr(CS+4*j,4)}, {vr(SEL,4)}, {vr(WF+8*s+4*j,4)}, {c}")
            for i in range(2):
                for j in range(2):
                    a = ACC + 16*(2*i+j); c = "0" if n == 0 else vr(a, 16)
                    xf = vr(XF+8*s+4*i, 4); wf = vr(WF+8*s+4*j, 4)
                    p, q = (wf, xf) if qk else (xf, wf)
                    L.append(f"v_mfma_f32_32x32x16_bf16 {vr(a,16)}, {p}, {q}, {c}")
            return L
        A("s_barrier")
        self.stamp(1)
        for r in reads(0) + reads(1): A(r)
        ahead = self.opts.get("ahead", 2)
        E = 1
        for n in range(40):
            if n % 4 == 2:
                A("s_waitcnt lgkmcnt(0)" if (ahead == 3 or n == 38) else "s_waitcnt lgkmcnt(6)")
                A("s_barrier")
            elif n < 39: A("s_waitcnt lgkmcnt(6)")
            if n < 38:
                rd = reads(n + 2)
            elif n == 38:
                rd = [f"ds_read_b32 v{XF+8*E}, v{SA}", f"ds_read_b32 v{XF+8*E+4}, v{SA} offset:128"]
                if qk:
                    rd += [f"ds_read_b32 v{T+14}, v{SA} offset:512", f"ds_read_b32 v{T+16}, v{SA} offset:640"]
                else:
                    for i in range(2):
                        for a in range(4):
                            rd.append(f"ds_read_b128 v[{8+16*i+4*a}:{8+16*i+4*a+3}], v{SB} offset:{512+i*128+a*32}")
            else: rd = []
            if self.opts.get("pfv") == n: self.pf_issue()
            m = mf(n)
            if self.opts.get("nomfma") and n > 0: m = []
            if self.opts.get("nolds") and n < 38: rd = []
            k = 0
            for x in m:
                A(x)
                for _ in range(2):
                    if k < len(rd): A(rd[k]); k += 1
            while k < len(rd): A(rd[k]); k += 1
        XF += 8*E; WF += 8*E
        for j in range(2):
            f = WF + 4*j
            A(f"v_cvt_pk_bf16_f32 v{f}, v{CS+4*j}, v{CS+4*j}")
            A(f"v_and_b32 v{T+8}, 0xffff0000, v{f}\nv_sub_f32 v{T+8}, v{CS+4*j}, v{T+8}\nv_cvt_pk_bf16_f32 v{f+1}, v{T+8}, v{T+8}")
            A(f"v_mov_b32 v{f+2}, 0\nv_mov_b32 v{f+3}, 0")
        A("s_waitcnt lgkmcnt(0)")
        for i in range(2):
            f = XF + 4*i
            A(f"v_cndmask_b32 v{f}, 0, v{f}, s[48:49]\nv_mov_b32 v{f+2}, 0\nv_mov_b32 v{f+3}, 0\nv_mov_b32 v{f+1}, v{f}")
        if qk:
            A(f"s_cmp_ge_u32 s{CT}, 5\ns_cselect_b32 s46, 1.0, {hex(f2u(QSCALE))}")
            A(f"v_mul_f32 v{T+14}, s46, v{T+14}\nv_mul_f32 v{T+16}, s46, v{T+16}")
        for i in range(2):
            for j in range(2):
                a = ACC + 16*(2*i+j)
                xf = vr(XF+4*i, 4); wf = vr(WF+4*j, 4)
                p, q = (wf, xf) if qk else (xf, wf)
                A(f"v_mfma_f32_32x32x16_bf16 {vr(a,16)}, {p}, {q}, {vr(a,16)}")
        PK = 40
        for i in range(2):
            for j in range(2):
                a = ACC + 16*(2*i+j); pk = PK + 8*((2*i+j) & 1)
                for e in range(8):
                    if qk:
                        A(f"v_pk_mul_f32 v[{a+2*e}:{a+2*e+1}], v[{a+2*e}:{a+2*e+1}], v[{T+14+2*i}:{T+15+2*i}] op_sel_hi:[1,0]")
                    else:
                        A(f"v_pk_mul_f32 v[{a+2*e}:{a+2*e+1}], v[{a+2*e}:{a+2*e+1}], v[{8+16*i+2*e}:{9+16*i+2*e}]")
                for e in range(8):
                    A(f"v_cvt_pk_bf16_f32 v{pk+e}, v{a+2*e}, v{a+2*e+1}")
                for r2 in range(2):
                    if qk:
                        off = (4*j + 2*r2) * 2048; imm = i * 512
                    else:
                        off = i * 40960 + r2 * 20480; imm = j * 512
                    A(f"s_add_u32 s47, s45, {off}")
                    A(f"buffer_store_dwordx4 v[{pk+4*r2}:{pk+4*r2+3}], v{SO}, s[{WS}:{WS+3}], s47 offen offset:{imm} sc1")

    def p1_loader(self):
        A = self.A
        D = 8; U = 20; T = 44; VX = 56; VW = 58; VS = 59
        A(f"s_sub_u32 s42, s{W}, 4")
        A(f"s_lshl_b32 s43, s{RB}, 7\ns_lshl_b32 s44, s{CT}, 3\ns_add_u32 s43, s43, s44\ns_lshl_b32 s44, s42, 1\ns_add_u32 s50, s43, s44\ns_mul_i32 s43, s50, 1280")
        A(f"v_lshrrev_b32 v{T}, 5, v1\nv_and_b32 v{T+1}, 31, v1\nv_mul_u32_u24 v{T+2}, 1280, v{T}\nv_lshl_add_u32 v{T+2}, v{T+1}, 3, v{T+2}")
        A(f"v_mov_b32 v{VS+1}, v{T+2}\ns_mov_b32 s59, s43")
        def sloads():
            for i in range(5):
                A(f"buffer_load_dwordx2 v[{D+2*i}:{D+2*i+1}], v{VS+1}, s[{X}:{X+3}], s59 offen offset:{i*256}")
        slate = self.opts.get("slate", 0)
        if slate == 0: sloads()
        A(f"v_add_u32 v{VS}, s50, v{T}\nv_lshlrev_b32 v{VS}, 4, v{VS}")
        A(f"s_cmp_eq_u32 s{CT}, 15\ns_cbranch_scc1 L_P1_SPARE")
        A(f"v_lshrrev_b32 v{T}, 3, v1\nv_mul_u32_u24 v{T}, 1280, v{T}\nv_and_b32 v{T+1}, 7, v1\nv_lshrrev_b32 v{T+2}, 4, v1")
        A(f"v_xor_b32 v{T+3}, v{T+1}, v{T+2}\nv_lshl_add_u32 v{VX}, v{T+3}, 4, v{T}")
        A(f"v_xor_b32 v{T+3}, 4, v{T+3}\nv_lshl_add_u32 v{VX+1}, v{T+3}, 4, v{T}")
        A(f"v_and_b32 v{T+1}, 15, v1\nv_lshlrev_b32 v{T+3}, 2, v{T+2}\nv_xor_b32 v{T+1}, v{T+1}, v{T+3}\nv_mul_u32_u24 v{T}, 3840, v{T+2}\nv_lshl_add_u32 v{VW}, v{T+1}, 4, v{T}")
        A(f"s_lshl_b32 s43, s{RB}, 2\ns_add_u32 s43, s43, s42\ns_mul_i32 s51, s43, {32*1280}")
        A(f"s_mul_i32 s52, s42, {16*3840}\ns_lshl_b32 s43, s{CT}, 8\ns_add_u32 s52, s52, s43")
        A(f"s_lshl_b32 s53, s42, 12")
        R = self.opts.get("rot", 10)
        if R == 1: A("s_mov_b32 s54, 0")
        else:
            mg = (256 + R - 1) // R
            assert all((v * mg) >> 8 == v // R for v in range(32))
            A(f"s_add_u32 s54, s{RB}, s{CT}\ns_mul_i32 s43, s54, {mg}\ns_lshr_b32 s43, s43, 8\ns_mul_i32 s43, s43, {R}\ns_sub_u32 s54, s54, s43")
            if self.opts.get("rotmul"): A(f"s_mul_i32 s54, s54, {self.opts['rotmul']}")
        def chunk(c):
            slot = c & 3
            A(f"s_lshl_b32 s43, s54, 7\ns_add_u32 s55, s51, s43\ns_mul_i32 s43, s54, 245760\ns_add_u32 s56, s52, s43")
            for i in range(4):
                A(f"s_add_u32 m0, s53, {L_XR + slot*16384 + i*1024}\ns_add_u32 s43, s55, {i*10240}")
                A(f"buffer_load_dwordx4 v{VX+(i&1)}, s[{X}:{X+3}], s43 offen lds")
                A(f"s_add_u32 m0, s53, {L_WR + slot*16384 + i*1024}\ns_add_u32 s43, s56, {i*15360}")
                A(f"buffer_load_dwordx4 v{VW}, s[{WQ}:{WQ+3}], s43 offen lds")
            A("s_add_u32 s54, s54, 1\ns_cmp_eq_u32 s54, 10\ns_cselect_b32 s54, 0, s54")
        def stats():
            for i in range(10):
                A(f"v_lshlrev_b32 v{U+2*i}, 16, v{D+i}\nv_and_b32 v{U+2*i+1}, 0xffff0000, v{D+i}")
            A(f"v_add_f32 v{T}, v{U}, v{U+1}")
            for i in range(2, 20): A(f"v_add_f32 v{T}, v{T}, v{U+i}")
            self.rowred(T); self.allred16([T], [T+1])
            A(f"v_mul_f32 v{T}, {hex(f2u(-1.0/640))}, v{T}")
            for i in range(20): A(f"v_add_f32 v{U+i}, v{U+i}, v{T}")
            A(f"v_mul_f32 v{T+2}, v{U}, v{U}")
            for i in range(1, 20): A(f"v_fmac_f32 v{T+2}, v{U+i}, v{U+i}")
            self.rowred(T+2); self.allred16([T+2], [T+1])
            A(f"v_mov_b32 v{T+1}, {hex(f2u(1e-5))}\nv_fmac_f32 v{T+1}, {hex(f2u(1.0/640))}, v{T+2}\nv_rsq_f32 v{T+5}, v{T+1}")
            A(f"v_cvt_pk_bf16_f32 v{T+3}, v{T}, v{T}\nv_and_b32 v{T+3}, 0xffff0000, v{T+3}\nv_sub_f32 v{T+3}, v{T}, v{T+3}\nv_cvt_pk_bf16_f32 v{T+4}, v{T}, v{T+3}")
            A(f"v_mov_b32 v{T+6}, v{T}\nv_mov_b32 v{T+7}, s{TAG}")
            A(f"s_mov_b32 s43, {WS_STAT1}\ns_mov_b32 exec_lo, 1\ns_mov_b32 exec_hi, 1")
            A(f"buffer_store_dwordx4 v[{T+4}:{T+7}], v{VS}, s[{WS}:{WS+3}], s43 offen sc1")
            A("s_mov_b64 exec, -1")
        ahead = self.opts.get("ahead", 2)
        npro = ahead
        q = [("S", 5)] if slate == 0 else []
        for c in range(npro):
            chunk(c); q.append((c, 8))
            if slate == c + 1: sloads(); q.append(("S", 5))
        self.tag_ready()
        sdone = False
        PV = 8
        for c in range(10):
            i = [g for g, _ in q].index(c)
            A(f"s_waitcnt vmcnt({sum(n for _, n in q[i+1:])})\ns_barrier")
            nx = c + ahead
            if nx < 10 and nx >= npro:
                chunk(nx); q.append((nx, 8))
            if not sdone and [g for g, _ in q].index("S") < i + (1 if slate == 0 else 0) + (slate == 0):
                sdone = True
                stats(); q.append(("ST", 1))
                A(f"s_lshl_b32 s43, s{RB}, 2\ns_add_u32 s43, s43, s42\ns_lshl_b32 s57, s43, 9\ns_add_u32 s57, s57, {WS_STAT1}")
                A(f"v_and_b32 v{VS}, 31, v1\nv_lshlrev_b32 v{T+9}, 2, v{VS}\nv_lshlrev_b32 v{VS}, 4, v{VS}")
                A(f"s_lshl_b32 s43, s42, 7\ns_add_u32 s43, s43, {L_MPK}\nv_add_u32 v{T+9}, s43, v{T+9}")
            if c == 7:
                A(f"buffer_load_dwordx4 v[{PV}:{PV+3}], v{VS}, s[{WS}:{WS+3}], s57 offen sc1"); q.append(("P", 1))
        A(f"s_mov_b32 s58, {SPIN}")
        A("L_P1_SPOLL:\ns_waitcnt vmcnt(0)")
        A(f"v_cmp_ne_u32 vcc, s{TAG}, v{PV+3}\ns_cbranch_vccz L_P1_SOK")
        A(f"buffer_load_dwordx4 v[{PV}:{PV+3}], v{VS}, s[{WS}:{WS+3}], s57 offen sc1")
        self.spin(58, "L_P1_SPOLL")
        A("s_waitcnt vmcnt(0)")
        A("L_P1_SOK:")
        A(f"ds_write_b32 v{T+9}, v{PV}\nds_write_b32 v{T+9}, v{PV+1} offset:512")
        A("s_waitcnt lgkmcnt(0)\ns_barrier")
        A("s_branch L_P1_LDONE")
        A("L_P1_SPARE:")
        if slate: sloads()
        self.tag_ready()
        A("s_waitcnt vmcnt(0)")
        stats()
        A("L_P1_LDONE:")
        A("s_barrier")

    def build(self):
        A = self.A
        import gen_p2
        self.prologue()
        self.roles()
        self.p1()
        if self.stop != "p1":
            gen_p2.p2(self)
            if self.stop != "p2":
                import gen_p3
                gen_p3.p3(self)
        self.finish()
        body, npad = fix_hazards(A.lines, verbose=self.opts.get("verbose"))
        hdr = open(f"cdna_kernels/{NAME}.s.ref").read().split("\n")
        top = [l for l in hdr if l.startswith(";   offset") or l.startswith("; Kernarg")]
        L0 = ["; @launch grid=(256,1,1) block=(512,1,1) lds=163840"]
        if self.opts.get("nop"):
            a = f"; @launch kernel={KN} grid=(256,1,1) block=(512,1,1) lds=163840"
            b = "; @launch kernel=nop_kernel grid=(256,1,1) block=(64,1,1) lds=0"
            L0 = [a, b] if self.opts["nop"] == 1 else [b, a]
        out = top + L0 + [
                     '.amdgcn_target "amdgcn-amd-amdhsa--gfx950"', ".text", f".globl {KN}", ".p2align 8",
                     f".type {KN},@function", f"{KN}:"]
        out += [l if l.endswith(":") else "    " + l for l in body]
        if self.opts.get("nop"):
            out += [".globl nop_kernel", ".p2align 8", ".type nop_kernel,@function", "nop_kernel:", "    s_endpgm"]
            out += ['.section .rodata,"a"', ".p2align 6", ".amdhsa_kernel nop_kernel",
                "  .amdhsa_next_free_vgpr 8", "  .amdhsa_next_free_sgpr 16", "  .amdhsa_accum_offset 8",
                "  .amdhsa_group_segment_fixed_size 0", "  .amdhsa_kernarg_size 88", "  .amdhsa_user_sgpr_count 2",
                "  .amdhsa_user_sgpr_kernarg_segment_ptr 1", "  .amdhsa_system_sgpr_workgroup_id_x 1", ".end_amdhsa_kernel"]
        out += ['.section .rodata,"a"', ".p2align 6", f".amdhsa_kernel {KN}",
                "  .amdhsa_next_free_vgpr 256", "  .amdhsa_next_free_sgpr 102", "  .amdhsa_accum_offset 256",
                "  .amdhsa_group_segment_fixed_size 0", "  .amdhsa_kernarg_size 88", "  .amdhsa_user_sgpr_count 2",
                "  .amdhsa_user_sgpr_kernarg_segment_ptr 1", "  .amdhsa_system_sgpr_workgroup_id_x 1", ".end_amdhsa_kernel", ""]
        return "\n".join(out), npad

if __name__ == "__main__":
    import argparse
    ap = argparse.ArgumentParser()
    ap.add_argument("-o", default=f"cdna_kernels/{NAME}.s")
    ap.add_argument("--stamps", action="store_true")
    ap.add_argument("--stop", default=None)
    ap.add_argument("-v", action="store_true")
    ap.add_argument("--opt", action="append", default=[])
    a = ap.parse_args()
    opts = {"verbose": a.v}
    for o in a.opt:
        k, _, v = o.partition("=")
        opts[k] = int(v) if v.lstrip("-").isdigit() else (v or True)
    g = Gen(stop=a.stop, stamps=a.stamps, opts=opts)
    txt, npad = g.build()
    open(a.o, "w").write(txt)
    print(f"wrote {a.o}: {txt.count(chr(10))} lines, {npad} pad states")
```
